```python
import torch

def _softmax(x, axis=-1):
    return torch.softmax(x, dim=axis)

def _gelu(x):
    return torch.nn.functional.gelu(x, approximate='tanh')

def _silu(x):
    return torch.nn.functional.silu(x)

def _sigmoid(x):
    return torch.sigmoid(x)

def _layernorm(x, axis=-1, eps=1e-05):
    m = x.mean(dim=axis, keepdim=True)
    v = x.var(dim=axis, keepdim=True, unbiased=False)
    return (x - m) / torch.sqrt(v + eps)

def _scatter_add(tgt, idx, src, axis=0):
    return tgt.clone().index_add_(axis, idx, src)

def _segment_sum(src, seg, n):
    out = torch.zeros((n,) + src.shape[1:], dtype=src.dtype)
    return out.index_add_(0, seg, src)

def _pad(x, pw):
    flat = tuple((v for pair in reversed(pw) for v in pair))
    return torch.nn.functional.pad(x, flat)
kernel_name = 'adaLN_cond__compressed_kv_cla__dense_activation_squared_relu__prompt'

def setup_inputs():

    _w = lambda a: (lambda t: t.to(torch.bfloat16) if t.is_floating_point() else t)(torch.as_tensor(a))

    def _A_setup():
        B, H, Sq, Sk, D, M = (1, 32, 2048, 2048, 128, 640)
        Dc = 4 * D
        return {'x': _w((lambda *s: torch.randn(*s, dtype=torch.bfloat16) * 0.05)(B, Sq, M)), 'c_kv': _w((lambda *s: torch.randn(*s, dtype=torch.bfloat16) * 1.6)(B, Sk, Dc)), 'w_q': _w((lambda *s: torch.randn(*s, dtype=torch.bfloat16) * 0.8)(M, H, D) * M ** (-0.5)), 'w_uk': _w((lambda *s: torch.randn(*s, dtype=torch.bfloat16) * 0.8)(Dc, H, D) * Dc ** (-0.5)), 'w_uv': _w((lambda *s: torch.randn(*s, dtype=torch.bfloat16) * 1.6)(Dc, H, D) * Dc ** (-0.5)), 'w_o': _w((lambda *s: torch.randn(*s, dtype=torch.bfloat16) * 1.6)(H, D, M) * (H * D) ** (-0.5))}
    _A_in = _A_setup()

    def _B_setup():
        B, S, D, F = (1, 2048, 640, 1728)
        return {'x': _w((lambda *s: torch.randn(*s, dtype=torch.bfloat16) * 0.05)(B, S, D)), 'w1': _w((lambda *s: torch.randn(*s, dtype=torch.bfloat16) * 0.05)(D, F)), 'b1': _w((lambda *s: torch.randn(*s, dtype=torch.bfloat16) * 0.4)(F)), 'w2': _w((lambda *s: torch.randn(*s, dtype=torch.bfloat16) * 0.05)(F, D)), 'b2': _w((lambda *s: torch.randn(*s, dtype=torch.bfloat16) * 3.2)(D))}
    _B_in = _B_setup()
    return {'A_x': _A_in['x'], 'A_c_kv': _A_in['c_kv'], 'A_w_q': _A_in['w_q'], 'A_w_uk': _A_in['w_uk'], 'A_w_uv': _A_in['w_uv'], 'A_w_o': _A_in['w_o'], 'B_x': _B_in['x'], 'B_w1': _B_in['w1'], 'B_b1': _B_in['b1'], 'B_w2': _B_in['w2'], 'B_b2': _B_in['b2'], 'c': _w((lambda *s: torch.randn(*s, dtype=torch.bfloat16) * 0.1)(1, 640) * 8.0), 'w_mod': _w((lambda *s: torch.randn(*s, dtype=torch.bfloat16) * 0.1)(640, 6 * 640) * 640 ** (-0.5) * 8.0)}

def reference(A_x, A_c_kv, A_w_q, A_w_uk, A_w_uv, A_w_o, B_x, B_w1, B_b1, B_w2, B_b2, c, w_mod):

    def _A_ref(x, c_kv, w_q, w_uk, w_uv, w_o):
        B, Sq, M = (x.shape[0], x.shape[1], x.shape[2])
        Sk = c_kv.shape[1]
        H, D = (w_q.shape[1], w_q.shape[2])
        q = torch.einsum('bqm,mhd->bhqd', x, w_q)
        k = torch.einsum('bkc,chd->bhkd', c_kv, w_uk)
        v = torch.einsum('bkc,chd->bhkd', c_kv, w_uv)
        scores = torch.einsum('bhqd,bhkd->bhqk', q, k) * D ** (-0.5)
        off = Sk - Sq
        qi = torch.arange(Sq)[:, None]
        kj = torch.arange(Sk)[None, :]
        cmask = kj <= qi + off
        scores = torch.where(cmask[None, None], scores, -1000000000.0)
        p = _softmax(scores, axis=-1)
        ctx = torch.einsum('bhqk,bhkd->bhqd', p, v)
        return torch.einsum('bhqd,hdm->bqm', ctx, w_o)

    def _B_ref(x, w1, b1, w2, b2):
        h = torch.einsum('bsd,df->bsf', x, w1) + b1
        zero = torch.zeros_like(h)
        r = torch.where(h > zero, h, zero)
        h = r * r
        out = torch.einsum('bsf,fd->bsd', h, w2) + b2
        return out
    x = A_x
    mod = (_silu(c) @ w_mod).reshape(c.shape[0], 6, 1, -1)
    sa, ca, ga, sb, cb, gb = (mod[:, 0].clone(), mod[:, 1].clone(), mod[:, 2].clone(), mod[:, 3].clone(), mod[:, 4].clone(), mod[:, 5].clone())
    h = _layernorm(x, axis=-1) * (1 + ca) + sa
    x = x + ga * _A_ref(h, A_c_kv, A_w_q, A_w_uk, A_w_uv, A_w_o)
    h = _layernorm(x, axis=-1) * (1 + cb) + sb
    x = x + gb * _B_ref(h, B_w1, B_b1, B_w2, B_b2)
    return x
```

```python
import re


class Asm:
    def __init__(self):
        self.lines = []
        self.blocks = {}
        self.cur = None

    def __call__(self, s):
        if isinstance(s, (list, tuple)):
            for x in s:
                self(x)
            return
        self.lines.append("    " + s)
        if self.cur is not None:
            self.blocks[self.cur].append(s)

    def label(self, l):
        self.lines.append(l + ":")
        self.cur = l
        assert l not in self.blocks, l
        self.blocks[l] = []

    def raw(self, s):
        self.lines.append(s)

    def text(self):
        return "\n".join(self.lines) + "\n"

    def check(self, path, verbose=False):
        ins = []
        for b in path:
            if isinstance(b, tuple):
                name, stop = b
                for s in self.blocks[name]:
                    ins.append((name, s))
                    if stop in s:
                        break
                else:
                    raise Exception(f"stop {stop} not found in {name}")
            else:
                ins += [(b, s) for s in self.blocks[b]]
        return check_stream(ins)


def kernel_header(a, name):
    a.raw(".text")
    a.raw(f".globl {name}")
    a.raw(".p2align 8")
    a.raw(f".type {name},@function")
    a.label(name)


def kernel_desc(a, name, vgpr=512, accum=256, sgpr=102):
    a.raw('.section .rodata,"a"')
    a.raw(".p2align 6")
    a.raw(f".amdhsa_kernel {name}")
    a.raw(f"  .amdhsa_next_free_vgpr {vgpr}")
    a.raw(f"  .amdhsa_next_free_sgpr {sgpr}")
    a.raw(f"  .amdhsa_accum_offset {accum}")
    a.raw("  .amdhsa_group_segment_fixed_size 0")
    a.raw("  .amdhsa_kernarg_size 128")
    a.raw("  .amdhsa_user_sgpr_count 2")
    a.raw("  .amdhsa_user_sgpr_kernarg_segment_ptr 1")
    a.raw("  .amdhsa_system_sgpr_workgroup_id_x 1")
    a.raw("  .amdhsa_float_denorm_mode_32 3")
    a.raw("  .amdhsa_float_denorm_mode_16_64 3")
    a.raw(".end_amdhsa_kernel")


def R(f, b, n=1):
    return f"{f}{b}" if n == 1 else f"{f}[{b}:{b+n-1}]"


_REG = re.compile(r"^-?(?:abs\()?\|?([vas])(?:\[(\d+):(\d+)\]|(\d+))\|?\)?$")
TRANS = ("v_exp_f32", "v_log_f32", "v_rcp_f32", "v_rsq_f32", "v_sqrt_f32", "v_sin_f32", "v_cos_f32")


def regs_of(op):
    op = op.strip()
    if op in ("vcc", "vcc_lo", "vcc_hi"):
        return {("s", "vcc")}
    if op in ("exec", "exec_lo", "exec_hi"):
        return {("s", "exec")}
    if op == "m0":
        return {("s", "m0")}
    m = _REG.match(op)
    if not m:
        return set()
    f = m.group(1)
    if m.group(4) is not None:
        return {(f, int(m.group(4)))}
    return {(f, i) for i in range(int(m.group(2)), int(m.group(3)) + 1)}


def split_ops(rest):
    out, depth, cur = [], 0, ""
    for ch in rest:
        if ch in "[(":
            depth += 1
        if ch in "])":
            depth -= 1
        if ch == "," and depth == 0:
            out.append(cur.strip())
            cur = ""
        else:
            cur += ch
    if cur.strip():
        out.append(cur.strip())
    if out:
        last = out[-1].split()
        mods = last[1:]
        out[-1] = last[0]
    else:
        mods = []
    return out, mods


class I:
    pass


def parse(s):
    s = s.split(";")[0].strip()
    i = I()
    i.text = s
    p = s.split(None, 1)
    i.mn = p[0]
    ops, mods = split_ops(p[1]) if len(p) > 1 else ([], [])
    i.ops, i.mods = ops, mods
    mn = i.mn
    i.kind = "other"
    i.wr, i.rd = set(), set()
    i.slots = 1
    rg = [regs_of(o) for o in ops]
    if mn.startswith(".") or mn.endswith(":"):
        i.kind = "dir"
        i.slots = 0
    elif mn.startswith("v_mfma"):
        i.kind = "mfma"
        i.wr = rg[0]
        i.A, i.B, i.C = rg[1], rg[2], rg[3]
        i.rd = rg[1] | rg[2] | rg[3]
        i.passes = 8 if "32x32" in mn else 4
    elif mn.startswith("v_"):
        i.kind = "valu"
        i.wr = set(rg[0])
        i.rd = set().union(*rg[1:]) if len(rg) > 1 else set()
        if mn.startswith(("v_fmac", "v_dot2c", "v_writelane", "v_pk_fmac")) or "dpp" in mn or "sdwa" in mn:
            i.rd |= rg[0]
        if mn.startswith("v_permlane") and "swap" in mn:
            i.wr = rg[0] | rg[1]
            i.rd = rg[0] | rg[1]
        if mn.startswith(("v_add_co", "v_sub_co", "v_addc_co", "v_subb_co", "v_subrev_co")):
            i.wr = rg[0] | rg[1]
            i.rd = set().union(*rg[2:])
        if mn.startswith("v_cmpx"):
            i.wr |= {("s", "exec")}
        if mn == "v_nop":
            i.wr = set()
    elif mn.startswith("ds_"):
        i.kind = "ds"
        if mn.startswith(("ds_read", "ds_bpermute", "ds_permute", "ds_swizzle")):
            i.wr = rg[0]
            i.rd = set().union(*rg[1:])
        else:
            i.rd = set().union(*rg)
    elif mn.startswith(("buffer_", "global_")):
        i.kind = "vmem"
        if mn in ("buffer_wbl2", "buffer_inv"):
            pass
        elif "lds" in mods:
            i.rd = set().union(*rg) | {("s", "m0")}
            i.dma = True
        elif "_load" in mn:
            i.wr = rg[0]
            i.rd = set().union(*rg[1:])
            if "d16" in mn:
                i.rd |= rg[0]
        elif "_atomic" in mn:
            i.rd = set().union(*rg)
            if "sc0" in mods:
                i.wr = rg[0]
        else:
            i.rd = set().union(*rg)
            if mn.startswith("buffer_store"):
                i.sdata = rg[0]
            else:
                i.sdata = rg[1]
    elif mn.startswith(("s_load", "s_memtime", "s_memrealtime", "s_buffer_load")):
        i.kind = "smem"
        i.wr = rg[0]
        i.rd = set().union(*rg[1:]) if len(rg) > 1 else set()
    elif mn == "s_waitcnt":
        i.kind = "wait"
        i.vm = i.lg = None
        m = re.search(r"vmcnt\((\d+)\)", s)
        if m:
            i.vm = int(m.group(1))
            assert i.vm <= 63, s
        m = re.search(r"lgkmcnt\((\d+)\)", s)
        if m:
            i.lg = int(m.group(1))
            assert i.lg <= 15, s
    elif mn == "s_nop":
        i.kind = "nop"
        i.slots = int(ops[0], 0) + 1
    elif mn.startswith("s_"):
        i.kind = "salu"
        if mn.startswith(("s_cmp", "s_cbranch", "s_branch", "s_barrier", "s_endpgm", "s_sleep", "s_setprio", "s_bitcmp", "s_setpc")):
            i.rd = set().union(*rg) if rg else set()
        else:
            i.wr = rg[0]
            i.rd = set().union(*rg[1:]) if len(rg) > 1 else set()
            if "saveexec" in mn:
                i.wr |= {("s", "exec")}
            if mn.startswith(("s_addk", "s_mulk")):
                i.rd |= rg[0]
    else:
        raise Exception("unknown instr " + s)
    return i


def check_stream(ins):
    errs = []
    P = [(b, parse(s)) for b, s in ins]
    P = [(b, i) for b, i in P if i.kind != "dir"]
    vmq, lgq = [], []
    hist = []
    pos = 0
    for n, (blk, i) in enumerate(P):
        def err(msg, other=None):
            errs.append(f"[{blk}] #{n} {i.text}  :: {msg}" + (f"  <- {other.text}" if other else ""))
        touched = i.rd | i.wr
        if i.kind == "wait":
            if i.vm is not None:
                while len(vmq) > i.vm:
                    vmq.pop(0)
            if i.lg is not None:
                if any(o.kind == "smem" for o in lgq):
                    if i.lg == 0:
                        lgq.clear()
                else:
                    while len(lgq) > i.lg:
                        lgq.pop(0)
        else:
            for o in vmq + lgq:
                if o.wr & touched:
                    if (o.wr & i.rd) or not (o.kind == i.kind and i.kind in ("ds", "vmem")):
                        err("touches pending load dest", o)
        if i.kind == "vmem":
            vmq.append(i)
            if len(vmq) > 63:
                err("vmcnt overflow (stalls, count saturates?)")
        if i.kind in ("ds", "smem"):
            lgq.append(i)
        for (p, o) in reversed(hist):
            d = pos - p - 1
            if d > 20:
                break
            need = 0
            why = ""
            if o.kind == "valu":
                vw = {r for r in o.wr if r[0] in "va"}
                sw = {r for r in o.wr if r[0] == "s"}
                if i.kind == "mfma" and (vw & i.rd):
                    need, why = 2, "valu->mfma"
                if i.kind == "valu":
                    if i.mn.startswith(("v_readfirstlane", "v_readlane")) and (vw & i.rd):
                        need, why = max(need, 1), "valu->readlane"
                    if i.mn.startswith("v_permlane") and (vw & i.rd):
                        need, why = max(need, 2), "valu->permlane"
                    if "dpp" in i.mn and (vw & i.rd):
                        need, why = max(need, 2), "valu->dpp"
                    if o.mn.startswith(TRANS) and not i.mn.startswith(TRANS) and (vw & i.rd):
                        need, why = max(need, 1), "trans->valu"
                    if "sdwa" in o.mn and (vw & (i.rd | i.wr)) and "dst_sel:DWORD" not in o.text:
                        need, why = max(need, 1), "sdwa->valu"
                    if sw & i.rd:
                        need, why = max(need, 4 if i.mn.startswith(("v_readlane", "v_writelane")) else 2), "valu sgpr->valu"
                    if ("s", "exec") in sw and ("dpp" in i.mn or i.mn.startswith(("v_permlane", "v_readlane", "v_readfirstlane", "v_writelane"))):
                        need, why = max(need, 5), "valu exec->dpp"
                if i.kind == "vmem" and (sw & i.rd):
                    need, why = max(need, 5), "valu sgpr->vmem"
                if i.kind == "mfma" and ("s", "exec") in sw:
                    need, why = max(need, 4), "valu exec->mfma"
            if o.kind == "mfma":
                big = {4: 8, 8: 12}[o.passes]
                if i.kind == "mfma":
                    if o.wr & (i.A | i.B):
                        need, why = big, "mfma D->A/B"
                    elif o.wr & i.C:
                        if not (o.wr == i.C and o.passes == i.passes):
                            need, why = big - 2, "mfma D->C overlap"
                    elif o.wr & i.wr:
                        need, why = big - 2, "mfma WAW (conservative)"
                elif i.kind in ("valu", "ds", "vmem") and (o.wr & touched):
                    need, why = big, "mfma D->valu/mem"
                if i.kind == "valu" and (o.C & i.wr):
                    need, why = max(need, {4: 3, 8: 7}[o.passes]), "mfma C WAR"
            if o.kind == "salu" and ("s", "m0") in o.wr and ("s", "m0") in i.rd and i.kind in ("vmem", "valu"):
                need, why = max(need, 1), "m0"
            if o.kind == "vmem" and hasattr(o, "sdata") and len(o.sdata) >= 3 and (o.sdata & i.wr):
                need, why = max(need, 2 if i.kind in ("valu", "mfma") else 1), "store data WAR"
            if d < need:
                err(f"hazard {why}: need {need} have {d}", o)
        hist.append((pos + i.slots - 1, i))
        if len(hist) > 40:
            hist.pop(0)
        pos += i.slots
    return errs
```

```python
from asmlib import *

KA = dict(x=0, ckv=8, wq=16, wuk=24, wuv=32, wo=40, bx=48, w1=56, b1=64, w2=72, b2=80, c=88, wmod=96,
          out=104, dbg=112, ws=120)
SZ = dict(x=2621440, ckv=2097152, wq=5242880, wuk=4194304, wuv=4194304, wo=5242880, w1=2211840, b1=3456,
          w2=2211840, b2=1280, c=1280, wmod=4915200, out=2621440, dbg=256)
WS = dict(
    modp=(0x0000000, 4 * 3840 * 4),
    modf=(0x0010000, 3840 * 4),
    vecf=(0x0010000 + 15360, 2560),
    cst=(0x0018000, 1728 * 8),
    flags=(0x0040000, 160 * 256),
    stats=(0x0020000, 2048 * 8 * 8),
    hf=(0x0100000, 2621440),
    xmf=(0x0400000, 2621440),
    x1=(0x0700000, 2621440),
    wof=(0x0A00000, 5242880),
    w1f=(0x1000000, 2211840),
    w2f=(0x1300000, 2211840),
    uf=(0x1600000, 2048 * 1728 * 2),
    kf=(0x2000000, 1 << 24),
    vf=(0x3000000, 1 << 24),
    ctxf=(0x4000000, 1 << 24),
    tim=(0x8000000, 1 << 20),
)
QSCALE = 1.4426950408889634 * 128 ** -0.5
MF = "v_mfma_f32_16x16x32_bf16"


def f32bits(x):
    import struct
    return struct.unpack("<I", struct.pack("<f", x))[0]


def srd_in(a, sreg, sptr, size):
    a(f"s_mov_b32 s{sreg}, s{sptr}")
    a(f"s_and_b32 s{sreg+1}, s{sptr+1}, 0xffff")
    a(f"s_mov_b32 s{sreg+2}, {size}")
    a(f"s_mov_b32 s{sreg+3}, 0x20000")


def srd_ws(a, sreg, sws, name, size=None):
    off, sz = WS[name]
    a(f"s_add_u32 s{sreg}, s{sws}, {off}")
    a(f"s_addc_u32 s{sreg+1}, s{sws+1}, 0")
    a(f"s_and_b32 s{sreg+1}, s{sreg+1}, 0xffff")
    a(f"s_mov_b32 s{sreg+2}, {sz if size is None else size}")
    a(f"s_mov_b32 s{sreg+3}, 0x20000")


def load_ptr(a, sreg, name):
    a(f"s_load_dwordx2 s[{sreg}:{sreg+1}], s[0:1], {KA[name]}")


import os
TIMING = bool(int(os.environ.get("TIMING", "0")))
_kidx = {}


def stamp(a, n):
    if TIMING:
        a(f"s_memrealtime s[{80+2*n}:{81+2*n}]")
        if n:
            a("s_waitcnt lgkmcnt(0)")


def endpgm(a, name, swave=16, vt=0, nst=1):
    if TIMING:
        k = _kidx.setdefault(name, len(_kidx))
        a("s_waitcnt vmcnt(0) lgkmcnt(0)")
        a("s_memrealtime s[94:95]")
        a("s_mov_b64 exec, -1")
        srd_ws(a, 96, 50, "tim")
        a("s_waitcnt lgkmcnt(0)")
        a(f"v_mov_b32 v{vt}, 0")
        for n in range(nst):
            a(f"v_writelane_b32 v{vt}, s{80+2*n}, {n}")
        a(f"v_writelane_b32 v{vt}, s94, 7")
        a(f"v_mbcnt_lo_u32_b32 v{vt+1}, -1, 0")
        a(f"v_mbcnt_hi_u32_b32 v{vt+1}, -1, v{vt+1}")
        a(f"v_cmp_gt_u32 vcc, 8, v{vt+1}")
        a(f"v_lshlrev_b32 v{vt+1}, 2, v{vt+1}")
        a(f"s_lshl_b32 s100, s2, 3")
        a(f"s_add_u32 s100, s100, s{swave}")
        a(f"s_lshl_b32 s100, s100, 5")
        a(f"s_add_u32 s100, s100, {k * 65536}")
        a("s_and_b64 exec, exec, vcc")
        a(f"buffer_store_dword v{vt}, v{vt+1}, s[96:99], s100 offen")
    a("s_endpgm")
```

```python
from common import *
from k_prep import lane_wave
from k_kv import head_pair

S0, P0, NEGM, CM, Q0, BIAS, ET = 0, 64, 96, 112, 128, 192, 208
VL16, VK, VV, VT, VLANE = 216, 217, 218, 219, 220
VWD, VWR = 222, 224
AO, AL, AONE, ARING = 0, 128, 144, 192
AH, AW = 0, 128
S_W, S_H, S_I = 16, 17, 18
S_OFF, S_MASK, S_Z, S_CNT = 24, 25, 26, 27
S_HO = 28
SRD_K, SRD_V, SRD_H, SRD_W, SRD_O = 8, 12, 52, 56, 60
BIG = 1e30


class VmTrack:
    def __init__(self, a):
        self.a, self.q = a, []

    def issue(self, tag):
        self.q.append(tag)

    def wait_text(self, tags):
        last = max((n for n, t in enumerate(self.q) if t in tags), default=-1)
        if last < 0:
            return None
        n = len(self.q) - 1 - last
        self.q = self.q[last + 1:]
        return f"s_waitcnt vmcnt({n})"


def schedule(a, mfmas, streams, pre=None):
    n = len(mfmas)
    total = sum(i["c"] for s in streams for i in s)
    base = 2
    while total > base * n:
        base += 1
    idx = [0] * len(streams)
    for g, (m, prei) in enumerate(mfmas):
        for p in prei:
            a(p)
        a(m)
        budget = base
        chosen = []
        while True:
            best = None
            for si, s in enumerate(streams):
                if idx[si] >= len(s):
                    continue
                it = s[idx[si]]
                if it["t"] > g or it["c"] > budget:
                    continue
                af = it.get("after")
                if af is not None and (af.get("g") is None or g < af["g"] + it.get("dist", 1)):
                    continue
                key = (it["t"] - it.get("pr", 0), si)
                if best is None or key < best[0]:
                    best = (key, si, it)
            if best is None:
                break
            _, si, it = best
            it["g"] = g
            idx[si] += 1
            budget -= it["c"]
            chosen.append((si, it))
        chosen.sort(key=lambda x: 0 if x[1].get("mem") else 1)
        for si, it in chosen:
            if it.get("cb"):
                it["cb"]()
            a(it["s"])
    left = True
    while left:
        left = False
        for si, s in enumerate(streams):
            while idx[si] < len(s):
                it = s[idx[si]]
                af = it.get("after")
                if af is not None and af.get("g") is None:
                    left = True
                    break
                if af is not None and af["g"] >= n:
                    a("s_nop 0")
                it["g"] = n
                idx[si] += 1
                if it.get("cb"):
                    it["cb"]()
                a(it["s"])


def kgroups(typ, half=0, adv=False):
    if typ == 1:
        return [dict(v=VK, off=half * 8192 + kb * 4096, adv=(adv and kb == 0)) for kb in range(2)]
    return [dict(v=VK, off=kb * 4096, adv=(adv and kb == 0)) for kb in range(4)]


def vgroups(typ, half=0, adv=False):
    if typ == 1:
        return [dict(v=VV, off=half * 8192 + j * 4096, adv=(adv and j == 0)) for j in range(2)]
    return [dict(v=VV, offs=[2 * j * 1024, 8192 + 2 * j * 1024, (2 * j + 1) * 1024, 8192 + (2 * j + 1) * 1024],
                 adv=(adv and j == 0)) for j in range(4)]


def group_reads(grp, slot):
    offs = grp.get("offs") or [grp["off"] + 1024 * k for k in range(4)]
    out = []
    for k, o in enumerate(offs):
        r = ARING + 4 * ((slot + k) % 16)
        out.append(f"ds_read_b128 a[{r}:{r+3}], v{grp['v']} offset:{o}")
    pre = []
    if grp["adv"]:
        if grp["v"] == VK:
            pre = [f"v_add_u32 v{VK}, 16384, v{VK}", f"v_and_b32 v{VK}, 0xffff, v{VK}"]
        else:
            pre = [f"v_add_u32 v{VT}, 16384, v{VV}", f"v_bfi_b32 v{VV}, s{S_MASK}, v{VT}, v{VV}"]
    return pre, out


def dma_items(k=True, v=True):
    L = []
    L.append(dict(c=1, s=f"s_and_b32 m0, s{S_OFF}, 0xffff"))
    if k:
        for n in range(4):
            L.append(dict(c=2, mem=1, s=f"buffer_load_dwordx4 v{VL16}, s[{SRD_K}:{SRD_K+3}], s{S_OFF} offen offset:{1024*n} lds"))
    if v:
        L.append(dict(c=1, s="s_xor_b32 m0, m0, 0x18000"))
        for n in range(4):
            L.append(dict(c=2, mem=1, s=f"buffer_load_dwordx4 v{VL16}, s[{SRD_V}:{SRD_V+3}], s{S_OFF} offen offset:{1024*n} lds"))
    L.append(dict(c=1, s=f"s_add_u32 s{S_OFF}, s{S_OFF}, 16384"))
    for n in range(1, len(L)):
        if "m0" in L[n - 1]["s"]:
            L[n]["after"] = L[n - 1]
            L[n]["dist"] = 1
    return L


def iteration(a, par, pos, qk=None, sm=None, pv=None, nxt=(), bar=None, dma=None, extra=()):
    mf = []
    groups = []
    gstart = []
    cmitems = []
    if qk:
        sb = S0 + 32 * (par ^ 1)
        nkb = 2 if qk["typ"] == 1 else 4
        mask = qk.get("mask")
        gs = list(qk["gs"])
        if mask:
            gs = [g for g in gs if g != mask[0]] + [mask[0]]
        for kb in range(nkb):
            slot = pos + 4 * len(groups)
            groups.append(qk["groups"][kb])
            gstart.append(len(mf))
            for g in gs:
                blk = kb * 4 + g if qk["typ"] == 1 else kb * 2 + (g - 2)
                d = sb + 4 * blk
                for sg in range(4):
                    if sg:
                        c = R("v", d, 4)
                    elif mask and g == mask[0]:
                        kk = mask[1] + kb
                        c = R("v", CM + 4 * kk, 4)
                        for t in range(4):
                            dst, bi, ng = CM + 4 * kk + t, BIAS + 4 * kk + t, NEGM + 4 * g + t
                            if qk.get("czero"):
                                s = f"v_mul_f32 v{dst}, s{S_Z}, v{bi}"
                            elif mask[2]:
                                s = f"v_fma_f32 v{dst}, s{S_Z}, v{bi}, v{ng}"
                            else:
                                s = f"v_add_f32 v{dst}, v{bi}, v{ng}"
                            cmitems.append(dict(c=1, s=s, need=len(mf)))
                    elif qk.get("czero"):
                        c = "0"
                    else:
                        c = R("v", NEGM + 4 * g, 4)
                    r = ARING + 4 * ((slot + sg) % 16)
                    q = Q0 + 16 * g + 4 * sg
                    mf.append([f"{MF} {R('v', d, 4)}, a[{r}:{r+3}], v[{q}:{q+3}], {c}", []])
    nqk = len(mf)
    if pv:
        pb = P0 + 16 * (par ^ 1)
        ones = []
        if pv["typ"] == 1:
            for g in pv["gs"]:
                ones.append(f"{MF} {R('a', AL+4*g, 4)}, {R('a', AONE, 4)}, {R('v', pb+4*g, 4)}, {R('a', AL+4*g, 4)}")
            for j in range(2):
                slot = pos + 4 * len(groups)
                groups.append(pv["groups"][j])
                gstart.append(len(mf))
                for k in range(4):
                    db = 4 * j + k
                    r = ARING + 4 * ((slot + k) % 16)
                    for g in pv["gs"]:
                        o = AO + 32 * g + 4 * db
                        mf.append([f"{MF} {R('a', o, 4)}, a[{r}:{r+3}], {R('v', pb+4*g, 4)}, {R('a', o, 4)}", []])
        else:
            for g in pv["gs"]:
                for tau in range(2):
                    f = (g - 2) * 2 + tau
                    ones.append(f"{MF} {R('a', AL+4*g, 4)}, {R('a', AONE, 4)}, {R('v', pb+4*f, 4)}, {R('a', AL+4*g, 4)}")
            for j in range(4):
                slot = pos + 4 * len(groups)
                groups.append(pv["groups"][j])
                gstart.append(len(mf))
                for k in range(2):
                    db = 2 * j + k
                    for g in pv["gs"]:
                        o = AO + 32 * g + 4 * db
                        for tau in range(2):
                            r = ARING + 4 * ((slot + 2 * k + tau) % 16)
                            f = (g - 2) * 2 + tau
                            mf.append([f"{MF} {R('a', o, 4)}, a[{r}:{r+3}], {R('v', pb+4*f, 4)}, {R('a', o, 4)}", []])
        for s in ones:
            mf.append([s, []])
    n = len(mf)
    ng = len(groups)
    allg = groups + list(nxt)
    rd = []
    gend = gstart[1:] + [n]
    barg = nqk if (qk and pv) else 0
    for k in range(ng):
        nout = 4 if k + 1 < len(allg) else 0
        mf[gstart[k]][1].append(f"s_waitcnt lgkmcnt({nout})")
        if k + 2 < len(allg):
            pre, rs = group_reads(allg[k + 2], pos + 4 * (k + 2))
            span = gend[k] - gstart[k]
            g0 = gstart[k]
            for p in pre:
                rd.append(dict(t=g0, c=1, s=p, pr=4, mem=1))
            for j, s in enumerate(rs):
                rd.append(dict(t=g0 + (j * span * 3) // 16, c=1, s=s, pr=4, mem=1, lim=gend[k]))
    streams = [rd]
    if sm:
        sb = S0 + 32 * par
        pb = P0 + 16 * par
        ex, cv = [], []
        frs = []
        if sm["typ"] == 1:
            for g in sm["gs"]:
                frs.append((g, [g, 4 + g]))
        else:
            for g in sm["gs"]:
                for tau in range(2):
                    frs.append(((g - 2) * 2 + tau, [(2 * tau) * 2 + g - 2, (2 * tau + 1) * 2 + g - 2]))
        ne = 8 * len(frs)
        k = 0
        for f, blks in frs:
            for hb, blk in enumerate(blks):
                for t in range(4):
                    it = dict(t=(k * (n - 3)) // ne, c=2, s=f"v_exp_f32 v{ET + k % 8}, v{sb + 4*blk + t}", pr=1)
                    if k >= 8:
                        it["after"] = cv[(k - 8) // 2]
                        it["dist"] = 0
                    ex.append(it)
                    if t & 1:
                        cv.append(dict(t=0, c=1, after=it, dist=1, pr=-100,
                                       s=f"v_cvt_pk_bf16_f32 v{pb + 4*f + 2*hb + t//2}, v{ET + (k-1) % 8}, v{ET + k % 8}"))
                    k += 1
        streams += [ex, cv]
    if bar is not None:
        if barg == 0:
            mf[0][1].insert(0, f"s_waitcnt vmcnt({bar}) lgkmcnt(0)")
            mf[0][1].insert(1, "s_barrier")
        else:
            mf[barg][1].append(f"s_waitcnt vmcnt({bar})")
            mf[barg][1].append("s_barrier")
    if dma:
        L = dma
        span = n - barg - 2
        for j, it in enumerate(L):
            it["t"] = barg + (j * span) // len(L)
            it["pr"] = 2
        streams.append(L)
    early = [it for it in cmitems if it["need"] < 3]
    for it in early:
        a(it["s"])
    if early:
        a("s_nop 1")
    late = [it for it in cmitems if it["need"] >= 3]
    for it in late:
        it["t"] = max(0, it["need"] - 8)
        it["pr"] = 50
    streams.append(late)
    ex2 = list(extra)
    for j, it in enumerate(ex2):
        it.setdefault("t", (j * (n - 2)) // len(ex2))
    streams.append(ex2)
    schedule(a, mf, streams)
    for it in rd:
        if "lim" in it:
            assert it["g"] < it["lim"], ("read slipped past its group", it)
    for it in late:
        assert it["g"] + 2 <= it["need"], ("cm late", it)
    return (pos + 4 * ng) % 16


def gen_att(a, name="att_kernel"):
    kernel_header(a, name)
    a("s_cmp_ge_u32 s2, 256")
    a(f"s_cbranch_scc1 {name}_end")
    stamp(a, 0)
    load_ptr(a, 40, "wq"); load_ptr(a, 50, "ws")
    lane_wave(a, VLANE, S_W, VT)
    head_pair(a, S_H, S_I)
    a(f"v_lshlrev_b32 v{VL16}, 4, v{VLANE}")
    a(f"v_lshrrev_b32 v1, 4, v{VLANE}")
    a(f"s_and_b32 s19, s{S_W}, 1")
    a(f"s_lshl_b32 s19, s19, 2")
    a(f"v_or_b32 v2, s19, v1")
    a(f"v_lshrrev_b32 v3, 1, v{VLANE}")
    a(f"v_and_b32 v3, 7, v3")
    a(f"v_xor_b32 v3, v3, v2")
    a(f"v_lshlrev_b32 v3, 5, v3")
    a(f"v_and_b32 v4, 1, v{VLANE}")
    a(f"v_lshl_add_u32 v3, v4, 4, v3")
    a(f"v_lshl_add_u32 v{VWD}, v1, 13, v3")
    a(f"v_add_u32 v{VWD+1}, {32768-1024}, v{VWD}")
    a(f"s_lshl_b32 s{S_HO}, s{S_I}, 3")
    a(f"s_add_u32 s{S_HO}, s{S_HO}, s{S_W}")
    a(f"s_add_u32 s{S_HO+1}, s{S_HO}, 4")
    a(f"s_sub_u32 s{S_HO+2}, 15, s{S_I}")
    a(f"s_lshl_b32 s{S_HO+2}, s{S_HO+2}, 3")
    a(f"s_add_u32 s{S_HO+2}, s{S_HO+2}, s{S_W}")
    a(f"s_add_u32 s{S_HO+3}, s{S_HO+2}, 4")
    for g in range(4):
        a(f"s_mul_i32 s{32+g}, s{S_HO+g}, 20480")
    a(f"s_lshl_b32 s36, s{S_W}, 16")
    a(f"s_lshl_b32 s19, s{S_H}, 8")
    a("s_add_u32 s36, s36, s19")
    a(f"s_lshl_b32 s37, s{S_W}, 11")
    a("s_add_u32 s37, s37, 98304")
    a("s_waitcnt lgkmcnt(0)")
    srd_in(a, SRD_W, 40, SZ["wq"])
    srd_ws(a, SRD_H, 50, "hf")
    vm = VmTrack(a)

    def w_dma(ks):
        L = [dict(c=1, s=f"s_add_u32 m0, s37, {8192*(ks & 7)}")]
        for n in range(2):
            L.append(dict(c=2, mem=1, cb=(lambda ks=ks: vm.issue(("W", ks))),
                          s=f"buffer_load_dwordx4 v{VWD+n}, s[{SRD_W}:{SRD_W+3}], s36 offen offset:{1024*n} lds"))
        L[1]["after"] = L[0]
        L[1]["dist"] = 1
        L.append(dict(c=1, s=f"s_add_u32 s36, s36, {32*8192}"))
        return L

    def h_load(ks):
        L = []
        for g in range(4):
            r = AH + 16 * (ks % 6) + 4 * g
            L.append(dict(c=2, mem=1, cb=(lambda ks=ks: vm.issue(("H", ks))),
                          s=f"buffer_load_dwordx4 a[{r}:{r+3}], v{VL16}, s[{SRD_H}:{SRD_H+3}], s{32+g} offen offset:{1024*(ks % 4)}"))
            if ks % 4 == 3:
                L.append(dict(c=1, s=f"s_add_u32 s{32+g}, s{32+g}, 4096"))
        return L

    def flat(L):
        for it in L:
            if it.get("cb"):
                it["cb"]()
            a(it["s"])
            if "m0" in it["s"].split(",")[0]:
                a("s_nop 0")
    for ks in range(6):
        flat(w_dma(ks))
        if ks < 5:
            flat(h_load(ks))
    a(f"v_lshrrev_b32 v2, 2, v{VLANE}")
    a("v_and_b32 v3, 3, v2")
    a("v_lshl_add_u32 v3, v1, 3, v3")
    a("v_lshlrev_b32 v3, 8, v3")
    a("v_and_b32 v2, 7, v2")
    a("v_lshl_add_u32 v3, v2, 5, v3")
    a(f"v_and_b32 v2, 3, v{VLANE}")
    a("v_lshl_add_u32 v3, v2, 3, v3")
    a("v_add_u32 v3, 98304, v3")
    for db in range(8):
        a(f"v_xor_b32 v{VWR+db}, {32*db}, v3")
    a(f"s_lshl_b32 s19, s{S_H}, 19")
    a(f"s_add_u32 s20, s19, {WS['kf'][0]}")
    a(f"s_add_u32 s{SRD_K}, s50, s20")
    a(f"s_addc_u32 s{SRD_K+1}, s51, 0")
    a(f"s_and_b32 s{SRD_K+1}, s{SRD_K+1}, 0xffff")
    a(f"s_sub_u32 s21, 16, s{S_I}")
    a(f"s_lshl_b32 s{SRD_K+2}, s21, 15")
    a(f"s_mov_b32 s{SRD_K+3}, 0x20000")
    a(f"s_add_u32 s20, s19, {WS['vf'][0] - 32768}")
    a(f"s_add_u32 s{SRD_V}, s50, s20")
    a(f"s_addc_u32 s{SRD_V+1}, s51, 0")
    a(f"s_and_b32 s{SRD_V+1}, s{SRD_V+1}, 0xffff")
    a(f"s_add_u32 s{SRD_V+2}, s{SRD_K+2}, 32768")
    a(f"s_mov_b32 s{SRD_V+3}, 0x20000")
    srd_ws(a, SRD_O, 50, "ctxf")
    a(f"s_lshl_b32 s{S_OFF}, s{S_W}, 12")
    a(f"s_mov_b32 s{S_MASK}, 0xffff")
    a(f"v_mov_b32 v{VK}, v{VL16}")
    a(f"v_add_u32 v{VV}, {65536 + 3*16384}, v{VL16}")
    a(f"v_and_b32 v2, 15, v{VLANE}")
    a(f"s_lshl_b32 s19, s{S_W}, 4")
    a("v_add_u32 v2, s19, v2")
    a("v_lshlrev_b32 v3, 2, v1")
    a("v_sub_u32 v2, v2, v3")
    a(f"v_mov_b32 v4, {hex(f32bits(-BIG))}")
    for kb in range(4):
        for t in range(4):
            a(f"v_cmp_gt_i32 vcc, {16*kb + t}, v2")
            a("s_nop 1")
            a(f"v_cndmask_b32 v{BIAS + 4*kb + t}, 0, v4, vcc")
    a(f"s_cmp_eq_u32 s{S_I}, 0")
    a(f"s_cselect_b32 s{S_Z}, 1.0, 0")

    def w_reads(ks):
        L = []
        for db in range(8):
            r = AW + 32 * (ks & 1) + 4 * db
            L.append(f"ds_read_b64_tr_b16 a[{r}:{r+1}], v{VWR+db} offset:{8192*(ks & 7)}")
            L.append(f"ds_read_b64_tr_b16 a[{r+2}:{r+3}], v{VWR+db} offset:{8192*(ks & 7) + 1024}")
        return L
    a(vm.wait_text({("W", 0)}))
    a("s_barrier")
    stamp(a, 1)
    for n, s in enumerate(w_reads(0)):
        a(s)
        if n == 7:
            a("s_waitcnt lgkmcnt(0)")
    kvq = []
    for d in range(4):
        L = dma_items(k=True, v=(d >= 2))
        for it in L:
            if it.get("mem"):
                tag = ("K", d) if f"s[{SRD_K}:" in it["s"] else ("V", d - 2)
                it["cb"] = (lambda tag=tag: vm.issue(tag))
        kvq.append(L)
    for ks in range(20):
        mf = []
        for db in range(8):
            for g in range(4):
                d = 32 * g + 4 * db
                w = AW + 32 * (ks & 1) + 4 * db
                hh = AH + 16 * (ks % 6) + 4 * g
                mf.append([f"{MF} {R('v', d, 4)}, a[{w}:{w+3}], a[{hh}:{hh+3}], {'0' if ks == 0 else R('v', d, 4)}", []])
        need = {("H", ks)}
        if ks % 2 == 0:
            need |= {("W", ks + 1), ("W", ks + 2)}
        wt = vm.wait_text(need)
        mf[0][1].append("s_waitcnt lgkmcnt(0)" if wt is None else wt + " lgkmcnt(0)")
        if ks % 2 == 0:
            mf[1][1].append("s_barrier")
        rd = [dict(t=1 + (j * 20) // 16, c=1, s=s, mem=1, pr=2) for j, s in enumerate(w_reads(ks + 1))] if ks < 19 else []
        ld = []
        if ks + 6 < 20:
            ld += w_dma(ks + 6)
        if ks + 5 < 20:
            ld += h_load(ks + 5)
        if 15 <= ks < 19:
            ld += kvq[ks - 15]
        for j, it in enumerate(ld):
            it["t"] = 1 + (j * 28) // len(ld)
        schedule(a, mf, [rd, ld])
    stamp(a, 2)
    a(vm.wait_text({("K", 0)}))
    a("s_barrier")
    for g2 in kgroups(1, 0):
        pre, rs = group_reads(g2, 0 if g2["off"] == 0 else 4)
        a(rs)
    for r in range(AO, AO + 144):
        a(f"v_accvgpr_write_b32 a{r}, 0")
    a(f"v_mov_b32 v{VT}, 0x3f803f80")
    for r in range(4):
        a(f"v_accvgpr_write_b32 a{AONE + r}, v{VT}")
    for g in range(4):
        for db in range(8):
            d = 32 * g + 4 * db
            q = Q0 + 16 * g + 4 * (db >> 1) + 2 * (db & 1)
            a(f"v_cvt_pk_bf16_f32 v{q}, v{d}, v{d+1}")
            a(f"v_cvt_pk_bf16_f32 v{q+1}, v{d+2}, v{d+3}")
    a("s_nop 1")
    G4, G3, G2 = [0, 1, 2, 3], [1, 2, 3], [2, 3]
    pos = iteration(a, 1, 0, qk=dict(typ=1, gs=G4, groups=kgroups(1, 0), mask=(0, 0, True), czero=True),
                    nxt=kgroups(1, 1))
    a("s_nop 7")
    for g in range(4):
        b0, b1, m = S0 + 4 * g, S0 + 16 + 4 * g, ET + g
        a(f"v_max3_f32 v{m}, v{b0}, v{b0+1}, v{b0+2}")
        a(f"v_max3_f32 v{m}, v{m}, v{b0+3}, v{b1}")
        a(f"v_max3_f32 v{m}, v{m}, v{b1+1}, v{b1+2}")
        a(f"v_max_f32 v{m}, v{m}, v{b1+3}")
    for sw in ("32", "16"):
        for g in range(4):
            a(f"v_mov_b32 v{ET+4+g}, v{ET+g}")
        a("s_nop 1")
        for g in range(4):
            a(f"v_permlane{sw}_swap_b32 v{ET+g}, v{ET+4+g}")
        for g in range(4):
            a(f"v_max_f32 v{ET+g}, v{ET+g}, v{ET+4+g}")
    for g in range(4):
        for t in range(4):
            a(f"v_sub_f32 v{NEGM+4*g+t}, 0, v{ET+g}")
    for g in range(4):
        for kb in range(2):
            for t in range(4):
                r = S0 + 16 * kb + 4 * g + t
                a(f"v_sub_f32 v{r}, v{r}, v{ET+g}")
    pos = iteration(a, 0, pos, qk=dict(typ=1, gs=G4, groups=kgroups(1, 1), mask=(0, 2, True)),
                    sm=dict(typ=1, gs=G4), nxt=kgroups(1, 0, adv=True), bar=8, dma=dma_items())
    assert pos == 0
    a(f"s_cmp_eq_u32 s{S_I}, 7")
    a(f"s_cselect_b32 s{S_Z}, 1.0, 0")
    a(f"s_lshl_b32 s{S_CNT}, s{S_I}, 1")
    a(f"s_sub_u32 s{S_CNT}, s{S_CNT}, 1")
    a(f"s_cmp_eq_u32 s{S_I}, 0")
    a(f"s_cbranch_scc1 {name}_maskB")

    def body1(qa, qb, sma, smb, pva, pvb, nxtb, extra=()):
        p = iteration(a, 1, 0, qk=dict(typ=1, groups=kgroups(1, 0), **qa), sm=dict(typ=1, gs=sma),
                      pv=dict(typ=1, gs=pva, groups=vgroups(1, 0, adv=True)), nxt=kgroups(1, 1))
        p = iteration(a, 0, p, qk=dict(typ=1, groups=kgroups(1, 1), **qb), sm=dict(typ=1, gs=smb),
                      pv=dict(typ=1, gs=pvb, groups=vgroups(1, 1)), nxt=nxtb, bar=8, dma=dma_items(), extra=extra)
        return p
    a(".p2align 4")
    a.label(f"{name}_loop1")
    p = body1(dict(gs=G4), dict(gs=G4), G4, G4, G4, G4, kgroups(1, 0, adv=True))
    assert p == 0
    a(f"s_sub_u32 s{S_CNT}, s{S_CNT}, 1")
    a(f"s_cmp_lg_u32 s{S_CNT}, 0")
    a(f"s_cbranch_scc1 {name}_loop1")
    a.label(f"{name}_maskA")
    body1(dict(gs=G4, mask=(0, 0, False)), dict(gs=G4, mask=(0, 2, False)), G4, G4, G4, G4, kgroups(1, 0, adv=True))
    a.label(f"{name}_maskB")
    body1(dict(gs=G3, mask=(1, 0, False)), dict(gs=G3, mask=(1, 2, False)), G4, G3, G4, G4, kgroups(2, adv=True)[:2])
    p = iteration(a, 1, 0, qk=dict(typ=2, gs=G2, groups=kgroups(2), mask=(2, 0, True)), sm=dict(typ=1, gs=G3),
                  pv=dict(typ=1, gs=G3, groups=vgroups(1, 0, adv=True)), nxt=kgroups(2, adv=True)[:2])
    assert p == 8
    a(f"s_lshl_b32 s{S_CNT}, s{S_I}, 1")
    a(f"s_sub_u32 s{S_CNT}, 13, s{S_CNT}")
    a(f"s_cmp_eq_u32 s{S_I}, 7")
    a(f"s_cbranch_scc1 {name}_X2")
    a.label(f"{name}_X1")
    p = iteration(a, 0, 8, qk=dict(typ=2, gs=G2, groups=kgroups(2)), sm=dict(typ=2, gs=G2),
                  pv=dict(typ=1, gs=G3, groups=vgroups(1, 1)), nxt=kgroups(2, adv=True)[:2], bar=8, dma=dma_items())
    assert p == 0
    a(".p2align 4")
    a.label(f"{name}_loop2")
    for par in (1, 0):
        p = iteration(a, par, 0, qk=dict(typ=2, gs=G2, groups=kgroups(2)), sm=dict(typ=2, gs=G2),
                      pv=dict(typ=2, gs=G2, groups=vgroups(2, adv=True)), nxt=kgroups(2, adv=True)[:2], bar=8,
                      dma=dma_items())
        assert p == 0
    a(f"s_sub_u32 s{S_CNT}, s{S_CNT}, 1")
    a(f"s_cmp_lg_u32 s{S_CNT}, 0")
    a(f"s_cbranch_scc1 {name}_loop2")
    a.label(f"{name}_tailA")
    iteration(a, 1, 0, qk=dict(typ=2, gs=G2, groups=kgroups(2), mask=(2, 0, False)), sm=dict(typ=2, gs=G2),
              pv=dict(typ=2, gs=G2, groups=vgroups(2, adv=True)), nxt=kgroups(2, adv=True)[:2], bar=8,
              dma=dma_items(k=False))
    iteration(a, 0, 0, qk=dict(typ=2, gs=[3], groups=kgroups(2), mask=(3, 0, False)), sm=dict(typ=2, gs=G2),
              pv=dict(typ=2, gs=G2, groups=vgroups(2, adv=True)), nxt=vgroups(2, adv=True)[:2], bar=4)
    a(f"s_branch {name}_tailB")
    a.label(f"{name}_X2")
    p = iteration(a, 0, 8, qk=dict(typ=2, gs=[3], groups=kgroups(2), mask=(3, 0, False)), sm=dict(typ=2, gs=G2),
                  pv=dict(typ=1, gs=G3, groups=vgroups(1, 1)), nxt=vgroups(2, adv=True)[:2], bar=8)
    assert p == 0
    a.label(f"{name}_tailB")
    iteration(a, 1, 0, sm=dict(typ=2, gs=[3]), pv=dict(typ=2, gs=G2, groups=vgroups(2)),
              nxt=vgroups(2, adv=True)[:2], bar=0)
    a("s_nop 1")
    iteration(a, 0, 0, pv=dict(typ=2, gs=[3], groups=vgroups(2)))
    stamp(a, 3)
    a("s_nop 7")
    a(f"s_mov_b32 s19, {hex(f32bits(2.0**64))}")
    for g in range(4):
        a(f"v_accvgpr_read_b32 v{ET+g}, a{AL+4*g}")
    a(f"v_cmp_ngt_f32 vcc, s19, v{ET}")
    for g in range(1, 4):
        a(f"v_cmp_ngt_f32 s[20:21], s19, v{ET+g}")
        a("s_nop 0")
        a("s_or_b64 vcc, vcc, s[20:21]")
    a("s_cmp_lg_u64 vcc, 0")
    a(f"s_cbranch_scc1 {name}_slow")
    a.label(f"{name}_epi")
    for g in range(4):
        a(f"v_accvgpr_read_b32 v{ET+g}, a{AL+4*g}")
    for g in range(4):
        a(f"v_rcp_f32 v{ET+g}, v{ET+g}")
        a(f"s_lshl_b32 s{32+g}, s{S_HO+g}, 17")
    a(f"s_lshl_b32 s19, s{S_H}, 12")
    n = 0
    for g in range(4):
        a(f"s_add_u32 s{32+g}, s{32+g}, s19")
        for sg in range(4):
            tb = 8 * (n % 4)
            d = 32 + 4 * (n % 4)
            for k in range(8):
                a(f"v_accvgpr_read_b32 v{tb+k}, a{AO + 32*g + 8*sg + k}")
            for k in range(8):
                a(f"v_mul_f32 v{tb+k}, v{ET+g}, v{tb+k}")
            for k in range(4):
                a(f"v_cvt_pk_bf16_f32 v{d+k}, v{tb+2*k}, v{tb+2*k+1}")
            a(f"buffer_store_dwordx4 v[{d}:{d+3}], v{VL16}, s[{SRD_O}:{SRD_O+3}], s{32+g} offen offset:{1024*sg}")
            n += 1
    endpgm(a, name, nst=4)
    a.label(f"{name}_slow")
    M = NEGM
    for r in range(AO, AO + 144):
        a(f"v_accvgpr_write_b32 a{r}, 0")
    a(f"v_and_b32 v{VT}, 15, v{VLANE}")
    for g in range(4):
        a(f"v_mov_b32 v{M+g}, {hex(f32bits(-BIG))}")
        a(f"s_lshl_b32 s19, s{S_HO+g}, 4")
        a(f"v_add_u32 v{M+4+g}, s19, v{VT}")
    a(f"v_lshrrev_b32 v{M+8}, 4, v{VLANE}")
    a(f"v_lshlrev_b32 v{M+8}, 2, v{M+8}")
    a(f"v_mov_b32 v{M+9}, {hex(f32bits(-BIG))}")
    a(f"s_mov_b32 s{S_OFF}, 0")
    a.label(f"{name}_slowl")
    for k in range(8):
        a(f"s_add_u32 s19, s{S_OFF}, {1024*k}")
        a(f"buffer_load_dwordx4 a[{ARING+4*k}:{ARING+4*k+3}], v{VL16}, s[{SRD_K}:{SRD_K+3}], s19 offen")
        a(f"s_add_u32 s19, s{S_OFF}, {32768 + 1024*k}")
        a(f"buffer_load_dwordx4 a[{ARING+32+4*k}:{ARING+32+4*k+3}], v{VL16}, s[{SRD_V}:{SRD_V+3}], s19 offen")
    a("s_waitcnt vmcnt(0)")
    for kb in range(2):
        for g in range(4):
            d = S0 + 16 * kb + 4 * g
            for sg in range(4):
                r = ARING + 16 * kb + 4 * sg
                q = Q0 + 16 * g + 4 * sg
                a(f"{MF} {R('v', d, 4)}, a[{r}:{r+3}], v[{q}:{q+3}], {'0' if sg == 0 else R('v', d, 4)}")
    a("s_nop 7")
    for g in range(4):
        a(f"v_sub_u32 v{VT}, v{M+4+g}, v{M+8}")
        for kb in range(2):
            for t in range(4):
                r = S0 + 16 * kb + 4 * g + t
                a(f"v_cmp_gt_i32 vcc, {16*kb + t}, v{VT}")
                a("s_nop 1")
                a(f"v_cndmask_b32 v{r}, v{r}, v{M+9}, vcc")
        b0, b1, m = S0 + 4 * g, S0 + 16 + 4 * g, ET + g
        a(f"v_max3_f32 v{m}, v{b0}, v{b0+1}, v{b0+2}")
        a(f"v_max3_f32 v{m}, v{m}, v{b0+3}, v{b1}")
        a(f"v_max3_f32 v{m}, v{m}, v{b1+1}, v{b1+2}")
        a(f"v_max3_f32 v{m}, v{m}, v{b1+3}, v{M+g}")
    for sw in ("32", "16"):
        for g in range(4):
            a(f"v_mov_b32 v{ET+4+g}, v{ET+g}")
        a("s_nop 1")
        for g in range(4):
            a(f"v_permlane{sw}_swap_b32 v{ET+g}, v{ET+4+g}")
        for g in range(4):
            a(f"v_max_f32 v{ET+g}, v{ET+g}, v{ET+4+g}")
    for g in range(4):
        a(f"v_sub_f32 v{ET+4+g}, v{M+g}, v{ET+g}")
        a(f"v_mov_b32 v{M+g}, v{ET+g}")
        a(f"v_exp_f32 v{ET+4+g}, v{ET+4+g}")
    for g in range(4):
        regs = [AO + 32 * g + k for k in range(32)] + [AL + 4 * g + k for k in range(4)]
        for r in regs:
            a(f"v_accvgpr_read_b32 v{VT}, a{r}")
            a(f"v_mul_f32 v{VT}, v{ET+4+g}, v{VT}")
            a(f"v_accvgpr_write_b32 a{r}, v{VT}")
        for kb in range(2):
            for t in range(4):
                r = S0 + 16 * kb + 4 * g + t
                a(f"v_sub_f32 v{r}, v{r}, v{M+g}")
            for t in range(4):
                r = S0 + 16 * kb + 4 * g + t
                a(f"v_exp_f32 v{r}, v{r}")
            a("s_nop 0")
            r = S0 + 16 * kb + 4 * g
            a(f"v_cvt_pk_bf16_f32 v{P0+4*g+2*kb}, v{r}, v{r+1}")
            a(f"v_cvt_pk_bf16_f32 v{P0+4*g+2*kb+1}, v{r+2}, v{r+3}")
    a("s_nop 1")
    for db in range(8):
        r = ARING + 32 + 4 * db
        for g in range(4):
            o = AO + 32 * g + 4 * db
            a(f"{MF} {R('a', o, 4)}, a[{r}:{r+3}], {R('v', P0+4*g, 4)}, {R('a', o, 4)}")
    for g in range(4):
        a(f"{MF} {R('a', AL+4*g, 4)}, {R('a', AONE, 4)}, {R('v', P0+4*g, 4)}, {R('a', AL+4*g, 4)}")
    a(f"v_add_u32 v{M+8}, 32, v{M+8}")
    a(f"s_add_u32 s{S_OFF}, s{S_OFF}, 8192")
    a(f"s_cmp_lt_u32 s{S_OFF}, s{SRD_K+2}")
    a("s_nop 7")
    a(f"s_cbranch_scc1 {name}_slowl")
    a(f"s_branch {name}_epi")
    a.label(f"{name}_end")
    a("s_endpgm")
    kernel_desc(a, name, vgpr=512, accum=256)
    n_ = name
    errs = a.check([n_, f"{n_}_loop1", f"{n_}_loop1", f"{n_}_maskA", f"{n_}_maskB", f"{n_}_X1", f"{n_}_loop2",
                    f"{n_}_loop2", f"{n_}_tailA", f"{n_}_tailB", f"{n_}_epi"])
    errs += a.check([n_, f"{n_}_maskB", f"{n_}_X2", f"{n_}_tailB", f"{n_}_slow", f"{n_}_slowl", f"{n_}_slowl",
                     f"{n_}_epi"])
    return dict(name=name, grid=256, block=256, lds=163840), errs
```

```python
from common import *
from k_prep import lane_wave


def head_pair(a, sh, si):
    a(f"s_and_b32 s{sh}, s2, 7")
    a(f"s_lshl_b32 s{sh}, s{sh}, 2")
    a(f"s_lshr_b32 s{si}, s2, 3")
    a(f"s_and_b32 s{si}, s{si}, 3")
    a(f"s_add_u32 s{sh}, s{sh}, s{si}")
    a(f"s_lshr_b32 s{si}, s2, 5")


def weave(a, mfmas, fillers, per_gap=2, start=0):
    fi = 0
    for n, m in enumerate(mfmas):
        a(m)
        if n < start:
            continue
        budget = per_gap
        while fi < len(fillers) and fillers[fi][0] <= budget:
            budget -= fillers[fi][0]
            a(fillers[fi][1])
            fi += 1
    while fi < len(fillers):
        a(fillers[fi][1])
        fi += 1


def acc_kv(x, y):
    b = x * 8 + y
    return ("v", 4 * b) if b < 32 else ("a", 4 * (b - 32))


def gen_kv(a, name="kv_kernel", timing=False):
    kernel_header(a, name)
    a("s_cmp_ge_u32 s2, 256")
    a(f"s_cbranch_scc1 {name}_end")
    stamp(a, 0)
    load_ptr(a, 40, "ckv"); load_ptr(a, 42, "wuk"); load_ptr(a, 44, "wuv"); load_ptr(a, 50, "ws")
    VL = 128
    lane_wave(a, VL, 16, 129)
    head_pair(a, 17, 18)
    VC = 130
    VW = 134
    a(f"v_lshrrev_b32 v140, 3, v{VL}")
    a(f"v_lshlrev_b32 v140, 10, v140")
    a(f"v_lshrrev_b32 v141, 4, v{VL}")
    a(f"v_and_b32 v142, 7, v{VL}")
    a(f"v_xor_b32 v142, v142, v141")
    a(f"v_lshl_add_u32 v{VC}, v142, 4, v140")
    a(f"v_xor_b32 v{VC+1}, 64, v{VC}")
    a(f"v_add_u32 v{VC+1}, {8192-1024}, v{VC+1}")
    a(f"v_add_u32 v{VC+2}, {2*(8192-1024)}, v{VC}")
    a(f"v_add_u32 v{VC+3}, {2*(8192-1024)}, v{VC+1}")
    a(f"v_lshrrev_b32 v142, 1, v{VL}")
    a(f"v_and_b32 v142, 7, v142")
    a(f"v_xor_b32 v142, v142, v141")
    a(f"v_lshlrev_b32 v142, 5, v142")
    a(f"v_and_b32 v143, 1, v{VL}")
    a(f"v_lshl_add_u32 v142, v143, 4, v142")
    a(f"v_lshl_add_u32 v{VW}, v141, 13, v142")
    a(f"v_add_u32 v{VW+1}, {32768-1024}, v{VW}")
    a(f"v_xor_b32 v{VW+2}, 128, v{VW}")
    a(f"v_add_u32 v{VW+3}, {3*(32768-1024)}, v{VW+2}")
    a(f"v_add_u32 v{VW+2}, {2*(32768-1024)}, v{VW+2}")
    a("s_waitcnt lgkmcnt(0)")
    srd_in(a, 8, 40, SZ["ckv"])
    a("s_cmp_ge_u32 s16, 2")
    a("s_cselect_b32 s12, s44, s42")
    a("s_cselect_b32 s13, s45, s43")
    a("s_and_b32 s13, s13, 0xffff")
    a(f"s_mov_b32 s14, {SZ['wuk']}")
    a("s_mov_b32 s15, 0x20000")
    a("s_lshl_b32 s24, s18, 18")
    a("s_lshl_b32 s19, s16, 16")
    a("s_add_u32 s24, s24, s19")
    a("s_add_u32 s25, s24, 32768")
    a("s_and_b32 s19, s16, 1")
    a("s_lshl_b32 s26, s19, 18")
    a("s_lshl_b32 s27, s17, 8")
    a("s_add_u32 s26, s26, s27")
    a("s_add_u32 s27, s26, 131072")
    a("s_lshl_b32 s28, s16, 13")

    def dma_tile(t):
        st = (t & 1) * 65536
        L = []
        for half in range(2):
            L.append((1, f"s_add_u32 m0, s28, {st + half*4096}"))
            for n in range(4):
                L.append((2, f"buffer_load_dwordx4 v{VC+n}, s[8:11], s{24+half} offen offset:{1024*n} lds"))
        for half in range(2):
            L.append((1, f"s_add_u32 m0, s28, {st + 32768 + half*4096}"))
            for n in range(4):
                L.append((2, f"buffer_load_dwordx4 v{VW+n}, s[12:15], s{26+half} offen offset:{1024*n} lds"))
        L.append((1, "s_add_u32 s24, s24, 128"))
        L.append((1, "s_add_u32 s25, s25, 128"))
        L.append((1, f"s_add_u32 s26, s26, {64*8192}"))
        L.append((1, f"s_add_u32 s27, s27, {64*8192}"))
        return L

    def flat(L):
        for c, s in L:
            a(s)
            if "m0" in s:
                a("s_nop 0")
    flat(dma_tile(0))
    flat(dma_tile(1))
    VCR = 144
    a(f"v_and_b32 v140, 15, v{VL}")
    a(f"v_lshrrev_b32 v142, 1, v140")
    a(f"v_xor_b32 v142, v142, v141")
    a(f"v_lshlrev_b32 v142, 4, v142")
    a(f"v_lshl_add_u32 v142, v140, 7, v142")
    a("s_lshl_b32 s29, s19, 14")
    a(f"v_add_u32 v{VCR}, s29, v142")
    a(f"v_xor_b32 v{VCR+1}, 64, v{VCR}")
    a(f"v_add_u32 v{VCR+2}, 65536, v{VCR}")
    a(f"v_add_u32 v{VCR+3}, 65536, v{VCR+1}")
    VWR = 148
    a(f"v_lshrrev_b32 v140, 2, v{VL}")
    a(f"v_and_b32 v142, 3, v140")
    a(f"v_lshl_add_u32 v143, v141, 3, v142")
    a(f"v_lshlrev_b32 v143, 8, v143")
    a(f"v_and_b32 v140, 7, v140")
    a(f"v_lshl_add_u32 v143, v140, 5, v143")
    a(f"v_and_b32 v140, 3, v{VL}")
    a(f"v_lshl_add_u32 v143, v140, 3, v143")
    a("s_lshr_b32 s29, s16, 1")
    a("s_lshl_b32 s29, s29, 14")
    a("s_add_u32 s29, s29, 32768")
    a(f"v_add_u32 v143, s29, v143")
    for db in range(8):
        a(f"v_xor_b32 v{VWR+db}, {32*db}, v143")
        a(f"v_add_u32 v{VWR+8+db}, 65536, v{VWR+db}")
    a("s_cmp_ge_u32 s16, 2")
    a(f"s_cselect_b32 s29, {WS['vf'][0]}, {WS['kf'][0]}") if False else None
    a(f"s_mov_b32 s29, {WS['kf'][0]}")
    a(f"s_cselect_b32 s29, {WS['vf'][0]}, s29")
    a("s_add_u32 s20, s50, s29")
    a("s_addc_u32 s21, s51, 0")
    a("s_and_b32 s21, s21, 0xffff")
    a(f"s_mov_b32 s22, {1 << 24}")
    a("s_mov_b32 s23, 0x20000")
    a("s_lshl_b32 s30, s17, 19")
    a("s_lshl_b32 s29, s18, 16")
    a("s_add_u32 s30, s30, s29")
    a("s_lshl_b32 s29, s19, 15")
    a("s_add_u32 s30, s30, s29")
    a(f"v_lshlrev_b32 v129, 4, v{VL}")
    a("s_cmp_ge_u32 s16, 2")
    a(f"s_cbranch_scc1 {name}_V")

    ST = 128

    def reads(ks, isV):
        t, k = ks >> 1, ks & 1
        st = t & 1
        base = ST + 64 * (ks & 1)
        cb = base + (0 if isV else 32)
        wb = base + (32 if isV else 0)
        Lc = [(1, f"ds_read_b128 a[{cb+4*y}:{cb+4*y+3}], v{VCR+2*st+k} offset:{2048*y}") for y in range(8)]
        Lw = []
        for db in range(8):
            Lw.append((1, f"ds_read_b64_tr_b16 a[{wb+4*db}:{wb+4*db+1}], v{VWR+8*st+db} offset:{8192*k}"))
            Lw.append((1, f"ds_read_b64_tr_b16 a[{wb+4*db+2}:{wb+4*db+3}], v{VWR+8*st+db} offset:{8192*k+1024}"))
        return (Lw + Lc) if isV else (Lc + Lw)

    def spread(L, every):
        out = []
        for c, s in L:
            out.append((2, s))
            for _ in range(every - 1):
                out.append((2, []))
        return out

    for isV in (False, True):
        lab = f"{name}_{'V' if isV else 'K'}"
        a.label(lab)
        a("s_waitcnt vmcnt(16)")
        a("s_barrier")
        stamp(a, 1)
        r0 = reads(0, isV)
        for n, (c, s) in enumerate(r0):
            a(s)
            if n == 11:
                a("s_waitcnt lgkmcnt(4)")
        for ks in range(16):
            t = ks >> 1
            base = ST + 64 * (ks & 1)
            mf = []
            for x in range(8):
                for y in range(8):
                    f, b = acc_kv(x, y)
                    c = "0" if ks == 0 else R(f, b, 4)
                    mf.append(f"{MF} {R(f, b, 4)}, a[{base+4*x}:{base+4*x+3}], a[{base+32+4*y}:{base+32+4*y+3}], {c}")
            a("s_waitcnt lgkmcnt(0)")
            fill = []
            if ks & 1:
                if t + 1 < 8:
                    fill += [(1, "s_waitcnt vmcnt(0)"), (1, "s_barrier")]
                    rd = reads(ks + 1, isV)
                    dm = dma_tile(t + 2) if t + 2 < 8 else []
                    while rd or dm:
                        if dm:
                            c, s = dm.pop(0)
                            if c == 1 and "m0" in s:
                                fill.append((1, s))
                                if rd:
                                    fill.append(rd.pop(0))
                                else:
                                    fill.append((1, "s_nop 0"))
                                continue
                            fill.append((c, s))
                        if rd:
                            fill.append((2, rd.pop(0)[1]))
            else:
                fill += spread(reads(ks + 1, isV), 2)
            weave(a, mf, fill)
        stamp(a, 2)
        a("s_nop 7")
        T = 170
        n = 0
        for p in range(4):
            for y in range(8):
                d = T + 4 * (n % 4)
                tm = T + 16
                for h2 in range(2):
                    f, b = acc_kv(2 * p + h2, y)
                    if f == "a":
                        for t_ in range(4):
                            a(f"v_accvgpr_read_b32 v{tm+t_}, a{b+t_}")
                        src = tm
                    else:
                        src = b
                    a(f"v_cvt_pk_bf16_f32 v{d+2*h2}, v{src}, v{src+1}")
                    a(f"v_cvt_pk_bf16_f32 v{d+2*h2+1}, v{src+2}, v{src+3}")
                off = (p * 8 + y) * 1024 if isV else (y * 4 + p) * 1024
                a(f"s_add_u32 s29, s30, {off & ~4095}")
                a(f"buffer_store_dwordx4 v[{d}:{d+3}], v129, s[20:23], s29 offen offset:{off & 4095}")
                n += 1
        endpgm(a, name, nst=3)
    a.label(f"{name}_end")
    a("s_endpgm")
    kernel_desc(a, name, vgpr=512, accum=256)
    errs = a.check([name, f"{name}_K"]) + a.check([name, f"{name}_V"])
    return dict(name=name, grid=256, block=256, lds=131072), errs
```

```python
from common import *

LOG2E = 1.4426950408889634


def lane_wave(a, vlane, swave, vtmp):
    a(f"v_lshrrev_b32 v{vtmp}, 6, v0")
    a(f"v_and_b32 v{vlane}, 63, v0")
    a(f"v_readfirstlane_b32 s{swave}, v{vtmp}")


def gen_p0(a, name="p0_kernel"):
    kernel_header(a, name)
    a("s_cmp_ge_u32 s2, 256")
    a(f"s_cbranch_scc1 {name}_end")
    stamp(a, 0)
    load_ptr(a, 40, "c"); load_ptr(a, 42, "wmod"); load_ptr(a, 44, "wo"); load_ptr(a, 46, "w1")
    load_ptr(a, 48, "w2"); load_ptr(a, 50, "ws")
    lane_wave(a, 1, 16, 2)
    a("s_waitcnt lgkmcnt(0)")
    a("s_cmp_ge_u32 s2, 240")
    a(f"s_cbranch_scc1 {name}_rp")
    a.label(f"{name}_gemv")
    srd_in(a, 8, 40, SZ["c"])
    srd_in(a, 12, 42, SZ["wmod"])
    srd_ws(a, 20, 50, "modp")
    a("s_mul_i32 s17, s2, 1093")
    a("s_lshr_b32 s17, s17, 16")
    a("s_mul_i32 s18, s17, 60")
    a("s_sub_u32 s18, s2, s18")
    a("v_lshrrev_b32 v2, 3, v1")
    a("v_mul_u32_u24 v2, 7680, v2")
    a("v_and_b32 v3, 7, v1")
    a("v_lshl_add_u32 v2, v3, 4, v2")
    a("s_mul_i32 s19, s17, 160")
    a("s_mul_i32 s24, s16, 40")
    a("s_add_u32 s24, s24, s19")
    a("s_mul_i32 s24, s24, 7680")
    a("s_lshl_b32 s25, s18, 7")
    a("s_add_u32 s24, s24, s25")
    a("s_mul_i32 s25, s16, 5120")
    for n in range(5):
        a(f"s_add_u32 m0, s25, {1024*n}")
        a(f"s_add_u32 s26, s24, {8*7680*n}")
        a("buffer_load_dwordx4 v2, s[12:15], s26 offen lds")
    a("v_and_b32 v4, 15, v1")
    a("v_min_u32 v4, 4, v4")
    a("v_lshrrev_b32 v5, 4, v1")
    a("v_lshlrev_b32 v6, 6, v4")
    a("v_lshl_add_u32 v6, v5, 4, v6")
    a("s_lshl_b32 s26, s19, 1")
    a("buffer_load_dwordx4 v[8:11], v6, s[8:11], s26 offen")
    a("s_waitcnt vmcnt(0)")
    for j in range(4):
        a(f"v_lshlrev_b32 v{12+2*j}, 16, v{8+j}")
        a(f"v_and_b32 v{13+2*j}, 0xffff0000, v{8+j}")
    for j in range(8):
        a(f"v_mul_f32 v{20+j}, {hex(f32bits(-LOG2E))}, v{12+j}")
    for j in range(8):
        a(f"v_exp_f32 v{20+j}, v{20+j}")
    for j in range(8):
        a(f"v_add_f32 v{20+j}, 1.0, v{20+j}")
    for j in range(8):
        a(f"v_rcp_f32 v{20+j}, v{20+j}")
    for j in range(8):
        a(f"v_mul_f32 v{20+j}, v{12+j}, v{20+j}")
    for j in range(4):
        a(f"v_cvt_pk_bf16_f32 v{8+j}, v{20+2*j}, v{21+2*j}")
    a("s_lshl_b32 s26, s16, 9")
    a("s_add_u32 s26, s26, 20480")
    a("v_add_u32 v6, s26, v6")
    a("ds_write_b128 v6, v[8:11]")
    a("v_lshl_add_u32 v7, v5, 4, s26")
    a("s_waitcnt lgkmcnt(0)")
    a("s_barrier")
    for ks in range(5):
        a(f"ds_read_b128 v[{32+4*ks}:{35+4*ks}], v7 offset:{64*ks}")
    a("v_lshrrev_b32 v3, 2, v1")
    a("v_and_b32 v3, 3, v3")
    a("v_lshl_add_u32 v3, v5, 3, v3")
    a("v_lshlrev_b32 v3, 7, v3")
    a("v_and_b32 v4, 3, v1")
    a("v_lshl_add_u32 v3, v4, 3, v3")
    a("s_lshl_b32 s26, s16, 5")
    a("v_add_u32 v3, s26, v3")
    for ks in range(5):
        a(f"ds_read_b64_tr_b16 v[{52+4*ks}:{53+4*ks}], v3 offset:{4096*ks}")
        a(f"ds_read_b64_tr_b16 v[{54+4*ks}:{55+4*ks}], v3 offset:{4096*ks+512}")
    a("s_waitcnt lgkmcnt(0)")
    for ks in range(5):
        a(f"{MF} v[72:75], v[{32+4*ks}:{35+4*ks}], v[{52+4*ks}:{55+4*ks}], {'0' if ks == 0 else 'v[72:75]'}")
    a("s_mul_i32 s26, s17, 15360")
    a("s_lshl_b32 s27, s18, 8")
    a("s_add_u32 s26, s26, s27")
    a("s_lshl_b32 s27, s16, 6")
    a("s_add_u32 s26, s26, s27")
    a("v_lshlrev_b32 v4, 2, v1")
    a("v_cmp_gt_u32 vcc, 16, v1")
    a("s_nop 4")
    a("s_and_saveexec_b64 s[28:29], vcc")
    a("buffer_store_dword v72, v4, s[20:23], s26 offen")
    a("s_mov_b64 exec, s[28:29]")
    a.label(f"{name}_rp")
    a("s_lshl_b32 s30, s2, 2")
    a("s_add_u32 s30, s30, s16")
    a("s_lshl_b32 s31, s16, 13")
    a("s_add_u32 s31, s31, 24576")
    a("v_lshrrev_b32 v5, 4, v1")
    a("v_lshrrev_b32 v3, 2, v1")
    a("v_and_b32 v3, 15, v3")
    a("v_and_b32 v4, 7, v3")
    a("v_lshlrev_b32 v10, 8, v3")
    a("v_lshl_add_u32 v10, v4, 5, v10")
    a("v_and_b32 v4, 3, v1")
    a("v_lshl_add_u32 v10, v4, 3, v10")
    a("v_add_u32 v10, s31, v10")
    a("v_lshlrev_b32 v11, 4, v1")
    a("v_lshrrev_b32 v3, 1, v1")
    a("v_and_b32 v3, 7, v3")
    a("v_xor_b32 v3, v3, v5")
    a("v_lshlrev_b32 v3, 5, v3")
    a("v_and_b32 v4, 1, v1")
    a("v_lshl_add_u32 v12, v4, 4, v3")
    a("v_xor_b32 v13, 128, v12")
    a.label(f"{name}_rpl")
    a("s_cmp_ge_u32 s30, 1190")
    a(f"s_cbranch_scc1 {name}_done")
    a("s_cmp_ge_u32 s30, 910")
    a(f"s_cbranch_scc1 {name}_w1")
    a("s_cmp_ge_u32 s30, 640")
    a(f"s_cbranch_scc1 {name}_w2")
    a.label(f"{name}_wo")
    srd_in(a, 8, 44, SZ["wo"]); srd_ws(a, 12, 50, "wof")
    a("s_mul_i32 s17, s30, 52429"); a("s_lshr_b32 s17, s17, 18")
    a("s_mul_i32 s18, s17, 5"); a("s_sub_u32 s18, s30, s18")
    a("s_mov_b32 s19, 1280"); a("s_mov_b32 s24, 128")
    a(f"s_branch {name}_go")
    a.label(f"{name}_w2")
    srd_in(a, 8, 48, SZ["w2"]); srd_ws(a, 12, 50, "w2f")
    a("s_sub_u32 s25, s30, 640")
    a("s_mul_i32 s17, s25, 52429"); a("s_lshr_b32 s17, s17, 18")
    a("s_mul_i32 s18, s17, 5"); a("s_sub_u32 s18, s25, s18")
    a("s_mov_b32 s19, 1280"); a("s_mov_b32 s24, 54")
    a(f"s_branch {name}_go")
    a.label(f"{name}_w1")
    srd_in(a, 8, 46, SZ["w1"]); srd_ws(a, 12, 50, "w1f")
    a("s_sub_u32 s25, s30, 910")
    a("s_mul_i32 s17, s25, 4682"); a("s_lshr_b32 s17, s17, 16")
    a("s_mul_i32 s18, s17, 14"); a("s_sub_u32 s18, s25, s18")
    a("s_mov_b32 s19, 3456"); a("s_mov_b32 s24, 20")
    a.label(f"{name}_go")
    a("v_mul_lo_u32 v14, s19, v5")
    a("v_add_u32 v15, v14, v13")
    a("v_add_u32 v14, v14, v12")
    a("s_mul_i32 s25, s17, s19")
    a("s_lshl_b32 s25, s25, 5")
    a("s_lshl_b32 s26, s18, 8")
    a("s_add_u32 s25, s25, s26")
    a("s_lshl_b32 s26, s19, 2")
    for n in range(8):
        a(f"s_add_u32 m0, s31, {1024*n}")
        a("s_nop 0")
        a(f"buffer_load_dwordx4 v{14 + (n & 1)}, s[8:11], s25 offen lds")
        a("s_add_u32 s25, s25, s26")
    a("s_waitcnt vmcnt(0)")
    for j in range(8):
        a(f"v_xor_b32 v16, {32*j}, v10")
        a(f"ds_read_b64_tr_b16 v[{20+4*j}:{21+4*j}], v16")
        a(f"ds_read_b64_tr_b16 v[{22+4*j}:{23+4*j}], v16 offset:4096")
        if j == 3:
            a("s_waitcnt lgkmcnt(0)")
    a("s_mul_i32 s25, s18, s24")
    a("s_lshl_b32 s25, s25, 3")
    a("s_add_u32 s25, s25, s17")
    a("s_lshl_b32 s25, s25, 10")
    a("s_lshl_b32 s26, s24, 10")
    a("s_waitcnt lgkmcnt(0)")
    for j in range(8):
        a(f"buffer_store_dwordx4 v[{20+4*j}:{23+4*j}], v11, s[12:15], s25 offen")
        a("s_add_u32 s25, s25, s26")
    a("s_add_u32 s30, s30, 1024")
    a("s_waitcnt vmcnt(0)")
    a(f"s_branch {name}_rpl")
    a.label(f"{name}_done")
    endpgm(a, name)
    a.label(f"{name}_end")
    a("s_endpgm")
    kernel_desc(a, name, vgpr=128, accum=128)
    errs = a.check([name, f"{name}_gemv", f"{name}_rp", f"{name}_rpl", f"{name}_wo", f"{name}_go", f"{name}_rpl",
                    f"{name}_w1", f"{name}_go"])
    return dict(name=name, grid=256, block=256, lds=57344), errs


def round_bf16_pair(a, d0, d1, tmp):
    a(f"v_cvt_pk_bf16_f32 v{tmp}, v{d0}, v{d1}")
    a(f"v_lshlrev_b32 v{d0}, 16, v{tmp}")
    a(f"v_and_b32 v{d1}, 0xffff0000, v{tmp}")


def gen_p1(a, name="p1_kernel"):
    kernel_header(a, name)
    a("s_cmp_ge_u32 s2, 164")
    a(f"s_cbranch_scc1 {name}_end")
    stamp(a, 0)
    load_ptr(a, 40, "x"); load_ptr(a, 42, "b1"); load_ptr(a, 50, "ws")
    lane_wave(a, 1, 16, 2)
    a("s_waitcnt lgkmcnt(0)")
    srd_ws(a, 20, 50, "modp")
    a("s_cmp_ge_u32 s2, 160")
    a(f"s_cbranch_scc1 {name}_fin")
    a("s_cmp_ge_u32 s2, 155")
    a(f"s_cbranch_scc1 {name}_end")
    a.label(f"{name}_sum")
    a("s_cmp_ge_u32 s2, 128")
    a("s_cselect_b32 s17, 7680, 0")
    a("v_lshlrev_b32 v2, 4, v0")
    for rnd in range(2):
        for p in range(4):
            a(f"s_add_u32 s18, s17, {p*15360 + rnd*4096}")
            a(f"buffer_load_dwordx4 v[{8+16*rnd+4*p}:{11+16*rnd+4*p}], v2, s[20:23], s18 offen")
    a("s_waitcnt vmcnt(0)")
    for rnd in range(2):
        b = 8 + 16 * rnd
        for t in range(4):
            a(f"v_add_f32 v{b+t}, v{b+t}, v{b+4+t}")
            a(f"v_add_f32 v{b+8+t}, v{b+8+t}, v{b+12+t}")
            a(f"v_add_f32 v{b+t}, v{b+t}, v{b+8+t}")
        round_bf16_pair(a, b, b + 1, 3)
        round_bf16_pair(a, b + 2, b + 3, 3)
    a("v_cmp_le_u32 vcc, 160, v0")
    a("v_mov_b32 v4, 0")
    a("s_nop 0")
    a("v_cndmask_b32 v4, 0, 1.0, vcc")
    for t in range(4):
        a(f"v_add_f32 v{8+t}, v4, v{8+t}")
        a(f"v_add_f32 v{24+t}, 1.0, v{24+t}")
    for b in (8, 24):
        round_bf16_pair(a, b, b + 1, 3)
        round_bf16_pair(a, b + 2, b + 3, 3)
    a("s_cmp_ge_u32 s2, 128")
    a(f"s_cbranch_scc1 {name}_cst")
    a.label(f"{name}_h")
    a(f"s_mov_b32 s18, {hex(f32bits(QSCALE))}")
    for b in (8, 24):
        for t in range(4):
            a(f"v_mul_f32 v{b+t}, s18, v{b+t}")
    a("ds_write_b128 v2, v[8:11]")
    a("ds_write_b128 v2, v[24:27] offset:4096")
    srd_in(a, 8, 40, SZ["x"])
    srd_ws(a, 12, 50, "hf")
    a("v_lshrrev_b32 v5, 4, v1")
    a("v_and_b32 v6, 15, v1")
    a("v_mul_u32_u24 v7, 1280, v5")
    a("v_lshl_add_u32 v7, v6, 4, v7")
    a("s_lshl_b32 s17, s2, 2")
    a("s_add_u32 s17, s17, s16")
    a("s_mul_i32 s17, s17, 5120")
    for n in range(5):
        a(f"buffer_load_dwordx4 v[{40+4*n}:{43+4*n}], v7, s[8:11], s17 offen offset:{256*n}")
    a("s_waitcnt vmcnt(0) lgkmcnt(0)")
    a("s_barrier")
    for j in range(20):
        a(f"v_lshlrev_b32 v{64+2*j}, 16, v{40+j}")
        a(f"v_and_b32 v{65+2*j}, 0xffff0000, v{40+j}")
    a("v_add_f32 v8, v64, v65")
    for j in range(2, 40):
        a(f"v_add_f32 v8, v8, v{64+j}")

    def rowsum(r):
        for sh in (8, 4, 2, 1):
            a("s_nop 1")
            a(f"v_add_f32_dpp v{r}, v{r}, v{r} row_ror:{sh} row_mask:0xf bank_mask:0xf")
    rowsum(8)
    a(f"v_mul_f32 v8, {hex(f32bits(1/640))}, v8")
    for j in range(40):
        a(f"v_sub_f32 v{64+j}, v{64+j}, v8")
    a("v_mul_f32 v9, v64, v64")
    for j in range(1, 40):
        a(f"v_fmac_f32 v9, v{64+j}, v{64+j}")
    rowsum(9)
    a(f"v_mov_b32 v10, {hex(f32bits(1e-5))}")
    a(f"v_fmac_f32 v10, {hex(f32bits(1/640))}, v9")
    a("v_rsq_f32 v10, v10")
    a("v_lshlrev_b32 v11, 5, v6")
    for j in range(40):
        a(f"v_mul_f32 v{64+j}, v10, v{64+j}")
    a("v_lshrrev_b32 v12, 2, v6")
    a("v_lshlrev_b32 v12, 10, v12")
    a("v_and_b32 v13, 3, v6")
    a("v_lshl_add_u32 v12, v13, 8, v12")
    a("v_lshl_add_u32 v12, v5, 4, v12")
    a("s_mul_i32 s17, s2, 20480")
    a("s_lshl_b32 s18, s16, 6")
    a("s_add_u32 s17, s17, s18")
    for n in range(5):
        a(f"ds_read_b128 v[16:19], v11 offset:{512*n}")
        a(f"ds_read_b128 v[20:23], v11 offset:{512*n+16}")
        a(f"ds_read_b128 v[24:27], v11 offset:{2560+512*n}")
        a(f"ds_read_b128 v[28:31], v11 offset:{2560+512*n+16}")
        a("s_waitcnt lgkmcnt(0)")
        for t in range(8):
            a(f"v_fmac_f32 v{16+t}, v{64+8*n+t}, v{24+t}")
        for t in range(4):
            a(f"v_cvt_pk_bf16_f32 v{40+4*n+t}, v{16+2*t}, v{17+2*t}")
        a(f"buffer_store_dwordx4 v[{40+4*n}:{43+4*n}], v12, s[12:15], s17 offen")
        a("s_add_u32 s17, s17, 4096")
    endpgm(a, name)
    a.label(f"{name}_cst")
    a("v_cvt_pk_bf16_f32 v8, v8, v9")
    a("v_cvt_pk_bf16_f32 v9, v10, v11")
    a("v_cvt_pk_bf16_f32 v24, v24, v25")
    a("v_cvt_pk_bf16_f32 v25, v26, v27")
    a("v_lshlrev_b32 v2, 3, v0")
    a("ds_write_b64 v2, v[8:9]")
    a("ds_write_b64 v2, v[24:25] offset:2048")
    srd_ws(a, 8, 50, "w1f")
    srd_ws(a, 12, 50, "cst")
    srd_in(a, 24, 42, SZ["b1"])
    a("s_sub_u32 s17, s2, 128")
    a("s_lshl_b32 s17, s17, 2")
    a("s_add_u32 s17, s17, s16")
    a("s_mul_i32 s18, s17, 20480")
    a("v_lshlrev_b32 v3, 4, v1")
    for ks in range(20):
        a(f"buffer_load_dwordx4 v[{40+4*ks}:{43+4*ks}], v3, s[8:11], s18 offen offset:{1024*(ks%4)}")
        if ks % 4 == 3:
            a("s_add_u32 s18, s18, 4096")
    a("v_and_b32 v6, 15, v1")
    a("v_lshlrev_b32 v7, 1, v6")
    a("s_lshl_b32 s18, s17, 5")
    a("buffer_load_ushort v4, v7, s[24:27], s18 offen")
    a("v_and_b32 v5, 1, v1")
    a("v_xor_b32 v5, 1, v5")
    a("v_mul_u32_u24 v5, 1280, v5")
    a("v_lshrrev_b32 v7, 4, v1")
    a("v_lshl_add_u32 v5, v7, 3, v5")
    a("s_waitcnt vmcnt(0) lgkmcnt(0)")
    a("s_barrier")
    for ks in range(20):
        b = 8 + 4 * (ks & 1)
        a(f"ds_read_b64 v[{b}:{b+1}], v5 offset:{64*ks}")
        a(f"ds_read_b64 v[{b+2}:{b+3}], v5 offset:{64*ks+32}")
        a("s_waitcnt lgkmcnt(0)")
        a(f"{MF} v[16:19], v[{b}:{b+3}], v[{40+4*ks}:{43+4*ks}], {'0' if ks == 0 else 'v[16:19]'}")
    a("v_lshlrev_b32 v4, 16, v4")
    a("v_lshlrev_b32 v7, 2, v6")
    a("s_lshl_b32 s18, s17, 6")
    a("v_cmp_gt_u32 vcc, 16, v1")
    a("s_nop 7")
    a("v_add_f32 v17, v17, v4")
    a("s_and_saveexec_b64 s[28:29], vcc")
    a("buffer_store_dword v16, v7, s[12:15], s18 offen")
    a("s_add_u32 s18, s18, 6912")
    a("buffer_store_dword v17, v7, s[12:15], s18 offen")
    endpgm(a, name)
    a.label(f"{name}_fin")
    srd_ws(a, 12, 50, "modf")
    a("s_sub_u32 s17, s2, 160")
    a("s_lshl_b32 s17, s17, 8")
    a("v_add_u32 v5, s17, v0")
    a("v_min_u32 v5, 959, v5")
    a("v_lshlrev_b32 v2, 4, v5")
    for p in range(4):
        a(f"s_mov_b32 s18, {p*15360}")
        a(f"buffer_load_dwordx4 v[{8+4*p}:{11+4*p}], v2, s[20:23], s18 offen")
    a("s_waitcnt vmcnt(0)")
    for t in range(4):
        a(f"v_add_f32 v{8+t}, v{8+t}, v{12+t}")
        a(f"v_add_f32 v{16+t}, v{16+t}, v{20+t}")
        a(f"v_add_f32 v{8+t}, v{8+t}, v{16+t}")
    round_bf16_pair(a, 8, 9, 3)
    round_bf16_pair(a, 10, 11, 3)
    a("v_subrev_u32 v6, 160, v5")
    a("v_cmp_gt_u32 vcc, 160, v6")
    a("v_subrev_u32 v6, 640, v5")
    a("v_cmp_gt_u32 s[28:29], 160, v6") if False else None
    a("v_mov_b32 v7, 160")
    a("v_cmp_gt_u32 s[28:29], v7, v6")
    a("s_nop 1")
    a("s_or_b64 vcc, vcc, s[28:29]")
    a("s_nop 1")
    a("v_cndmask_b32 v4, 0, 1.0, vcc")
    for t in range(4):
        a(f"v_add_f32 v{8+t}, v4, v{8+t}")
    round_bf16_pair(a, 8, 9, 3)
    round_bf16_pair(a, 10, 11, 3)
    a("buffer_store_dwordx4 v[8:11], v2, s[12:15], 0 offen")
    a.label(f"{name}_end")
    a("s_endpgm")
    kernel_desc(a, name, vgpr=128, accum=128)
    errs = a.check([name, f"{name}_sum", f"{name}_h"]) + a.check([name, f"{name}_sum", f"{name}_cst"]) + \
        a.check([name, f"{name}_fin"])
    return dict(name=name, grid=164, block=256, lds=8192), errs
```

```python
from common import *
from k_prep import lane_wave
from k_att import VmTrack, schedule


def quad_sum(a, regs, tmp):
    for sw in ("32", "16"):
        for n, r in enumerate(regs):
            a(f"v_mov_b32 v{tmp+n}, v{r}")
        a("s_nop 1")
        for n, r in enumerate(regs):
            a(f"v_permlane{sw}_swap_b32 v{r}, v{tmp+n}")
        for n, r in enumerate(regs):
            a(f"v_add_f32 v{r}, v{r}, v{tmp+n}")


def gen_t14(a, name, first):
    KS = 128 if first else 54
    NS = 32 if first else 14
    NB, LEAD = 4, 3
    kernel_header(a, name)
    a("s_cmp_ge_u32 s2, 256")
    a(f"s_cbranch_scc1 {name}_end")
    stamp(a, 0)
    load_ptr(a, 50, "ws")
    if first:
        load_ptr(a, 40, "x")
    else:
        load_ptr(a, 40, "out"); load_ptr(a, 42, "b2")
    VLANE, VA, VW, VL16 = 80, 84, 88, 93
    lane_wave(a, VLANE, 16, 81)
    a("s_and_b32 s17, s2, 6")
    a("s_lshl_b32 s17, s17, 2")
    a("s_lshr_b32 s19, s2, 3")
    a("s_and_b32 s18, s19, 7")
    a("s_add_u32 s17, s17, s18")
    a("s_and_b32 s18, s2, 1")
    a("s_lshl_b32 s18, s18, 2")
    a("s_lshr_b32 s19, s19, 3")
    a("s_add_u32 s18, s18, s19")
    a(f"v_lshlrev_b32 v{VL16}, 4, v{VLANE}")
    for r in range(4):
        a(f"s_add_u32 s19, s16, {r}")
        a("s_and_b32 s19, s19, 3")
        a("s_lshl_b32 s20, s17, 2")
        a("s_add_u32 s19, s19, s20")
        a(f"s_mul_i32 s19, s19, {KS*1024}")
        a(f"v_add_u32 v{VA+r}, s19, v{VL16}")
    a(f"s_mul_i32 s19, s18, {5*KS*1024}")
    for c in range(5):
        a(f"v_add_u32 v{VW+c}, s19, v{VL16}")
        a(f"s_add_u32 s19, s19, {KS*1024}")
    if first:
        a("s_lshl_b32 s24, s16, 15")
    else:
        a("s_mul_i32 s24, s16, 14")
        a("s_cmp_eq_u32 s16, 3")
        a("s_cselect_b32 s24, 41, s24")
        a("s_lshl_b32 s24, s24, 10")
    a("s_waitcnt lgkmcnt(0)")
    srd_ws(a, 8, 50, "ctxf" if first else "uf")
    srd_ws(a, 12, 50, "wof" if first else "w2f")
    vm = VmTrack(a)

    def loads(s):
        L = []
        b = 36 * (s % NB)
        order = [("w", 0), ("a", 0), ("a", 1), ("a", 2), ("a", 3), ("w", 1), ("w", 2), ("w", 3), ("w", 4)]
        for k, n in order:
            r = b + (16 + 4 * n if k == "w" else 4 * n)
            v, srd = (VW + n, 12) if k == "w" else (VA + n, 8)
            L.append(dict(c=2, mem=1, cb=(lambda s=s: vm.issue(("L", s))),
                          s=f"buffer_load_dwordx4 a[{r}:{r+3}], v{v}, s[{srd}:{srd+3}], s24 offen offset:{1024*(s % 4)}"))
        if s % 4 == 3:
            L.append(dict(c=1, s="s_add_u32 s24, s24, 4096"))
        return L
    for s in range(LEAD):
        for it in loads(s):
            if it.get("cb"):
                it["cb"]()
            a(it["s"])
    VQ, VR, VX, VV = 94, 95, 96, 97
    a(f"v_lshrrev_b32 v{VQ}, 4, v{VLANE}")
    a(f"v_and_b32 v{VR}, 15, v{VLANE}")
    a(f"v_mul_u32_u24 v{VX}, 1280, v{VR}")
    a(f"v_lshl_add_u32 v{VX}, v{VQ}, 3, v{VX}")
    a(f"v_lshlrev_b32 v{VV}, 4, v{VQ}")
    a("s_lshl_b32 s25, s17, 2")
    a("s_add_u32 s25, s25, s16")
    a("s_mul_i32 s26, s25, 20480")
    a("s_mul_i32 s19, s18, 160")
    a("s_add_u32 s26, s26, s19")
    a("s_mul_i32 s27, s18, 320")
    a("s_lshl_b32 s28, s2, 2")
    a("s_add_u32 s28, s28, s16")
    a("s_mul_i32 s28, s28, 2560")
    srd_in(a, 52, 40, SZ["x"])
    srd_ws(a, 56, 50, "modf")
    srd_ws(a, 60, 50, "x1")
    EX, EG, EC = 100, 112, 132
    epi = []

    def eld(s):
        epi.append(dict(c=2, mem=1, cb=(lambda: vm.issue("E")), s=s))
    if first:
        srd_ws(a, 64, 50, "xmf")
        srd_ws(a, 68, 50, "stats")
        a(f"s_add_u32 s29, s27, {2*2560}")
        a(f"s_add_u32 s30, s27, {4*2560}")
        for c in range(5):
            eld(f"buffer_load_dwordx2 v[{EX+2*c}:{EX+2*c+1}], v{VX}, s[52:55], s26 offen offset:{32*c}")
            eld(f"buffer_load_dwordx4 v[{EG+4*c}:{EG+4*c+3}], v{VV}, s[56:59], s29 offen offset:{64*c}")
            eld(f"buffer_load_dwordx4 v[{EC+4*c}:{EC+4*c+3}], v{VV}, s[56:59], s30 offen offset:{64*c}")
    else:
        srd_in(a, 64, 42, SZ["b2"])
        a(f"s_add_u32 s29, s27, {5*2560}")
        a(f"v_lshlrev_b32 v98, 3, v{VQ}")
        a(f"v_lshlrev_b32 v99, 3, v{VLANE}")
        eld(f"buffer_load_dwordx4 v[{EX}:{EX+3}], v{VL16}, s[60:63], s28 offen")
        eld(f"buffer_load_dwordx4 v[{EX+4}:{EX+7}], v{VL16}, s[60:63], s28 offen offset:1024")
        eld(f"buffer_load_dwordx2 v[{EX+8}:{EX+9}], v99, s[60:63], s28 offen offset:2048")
        for c in range(5):
            eld(f"buffer_load_dwordx4 v[{EG+4*c}:{EG+4*c+3}], v{VV}, s[56:59], s29 offen offset:{64*c}")
            eld(f"buffer_load_dwordx2 v[{EC+2*c}:{EC+2*c+1}], v98, s[64:67], s19 offen offset:{32*c}")
    VD = 152
    for r in range(1, 4):
        a(f"s_add_u32 s20, s16, {r}")
        a("s_and_b32 s20, s20, 3")
        a("s_mul_i32 s20, s20, 15360")
        a(f"s_add_u32 s20, s20, {(r-1)*5120}")
        a(f"v_add_u32 v{VD+r-1}, s20, v{VL16}")
    a("s_mul_i32 s20, s16, 15360")
    a(f"v_add_u32 v{VD+3}, s20, v{VL16}")
    for s in range(NS):
        b = 36 * (s % NB)
        mf = []
        for c in range(5):
            for r in range(4):
                d = 20 * r + 4 * c
                mf.append([f"{MF} {R('v', d, 4)}, a[{b+16+4*c}:{b+19+4*c}], a[{b+4*r}:{b+4*r+3}], "
                           f"{'0' if s == 0 else R('v', d, 4)}", []])
        ld = loads(s + LEAD) if s + LEAD < NS else []
        if s + LEAD >= NS and s < NS - 1:
            k = (len(epi) + 1) // 2 if s + LEAD == NS else len(epi)
            ld, epi = epi[:k], epi[k:]
        if not first and s == NS - 1:
            a("s_cmp_ge_u32 s16, 2")
            a(f"s_cbranch_scc1 {name}_red")
            a.label(f"{name}_last")
        mf[0][1].append(vm.wait_text({("L", s)}))
        if s == 0:
            stamp(a, 1)
        for j, it in enumerate(ld):
            it["t"] = (j * 19) // len(ld)
        schedule(a, mf, [ld])
    a.label(f"{name}_red")
    stamp(a, 2)
    a("s_nop 7")
    for r in range(1, 4):
        for c in range(5):
            d = 20 * r + 4 * c
            a(f"ds_write_b128 v{VD+r-1}, v[{d}:{d+3}] offset:{1024*c}")
    a("s_waitcnt lgkmcnt(0)")
    a("s_barrier")
    for r in range(1, 4):
        for c in range(5):
            d = 20 * r + 4 * c
            a(f"ds_read_b128 v[{d}:{d+3}], v{VD+3} offset:{(r-1)*5120 + 1024*c}")
    for r in range(1, 4):
        a(f"s_waitcnt lgkmcnt({5*(3-r)})")
        for k in range(20):
            a(f"v_add_f32 v{k}, v{k}, v{20*r+k}")
    a("s_waitcnt vmcnt(0)")
    X = 20
    for j in range(10):
        a(f"v_lshlrev_b32 v{X+2*j}, 16, v{EX+j}")
        a(f"v_and_b32 v{X+2*j+1}, 0xffff0000, v{EX+j}")
    if first:
        for k in range(20):
            a(f"v_fmac_f32 v{X+k}, v{EG+k}, v{k}")
        PK = 40
        for j in range(10):
            a(f"v_cvt_pk_bf16_f32 v{PK+j}, v{X+2*j}, v{X+2*j+1}")
        a(f"v_lshlrev_b32 v99, 3, v{VLANE}")
        a(f"buffer_store_dwordx4 v[{PK}:{PK+3}], v{VL16}, s[60:63], s28 offen")
        a(f"buffer_store_dwordx4 v[{PK+4}:{PK+7}], v{VL16}, s[60:63], s28 offen offset:1024")
        a(f"buffer_store_dwordx2 v[{PK+8}:{PK+9}], v99, s[60:63], s28 offen offset:2048")
        for j in range(10):
            a(f"v_lshlrev_b32 v{X+2*j}, 16, v{PK+j}")
            a(f"v_and_b32 v{X+2*j+1}, 0xffff0000, v{PK+j}")
        for k in range(20):
            a(f"v_mul_f32 v{k}, v{X+k}, v{EC+k}")
        XM = 52
        for j in range(10):
            a(f"v_cvt_pk_bf16_f32 v{XM+j}, v{2*j}, v{2*j+1}")
        a("s_mul_i32 s20, s18, 5")
        a("s_mul_i32 s21, s25, 20480")
        for c in range(5):
            a(f"s_add_u32 s22, s20, {c}")
            a("s_lshr_b32 s23, s22, 1")
            a("s_lshl_b32 s23, s23, 10")
            a("s_and_b32 s22, s22, 1")
            a("s_lshl_b32 s22, s22, 3")
            a("s_add_u32 s22, s22, s23")
            a("s_add_u32 s22, s22, s21")
            a(f"buffer_store_dwordx2 v[{XM+2*c}:{XM+2*c+1}], v{VL16}, s[64:67], s22 offen")
        a(f"v_add_f32 v64, v{X}, v{X+1}")
        for k in range(2, 20):
            a(f"v_add_f32 v64, v64, v{X+k}")
        quad_sum(a, [64], 66)
        a(f"v_mul_f32 v64, {hex(f32bits(1/80))}, v64")
        for k in range(20):
            a(f"v_sub_f32 v{X+k}, v{X+k}, v64")
        a(f"v_mul_f32 v65, v{X}, v{X}")
        for k in range(1, 20):
            a(f"v_fmac_f32 v65, v{X+k}, v{X+k}")
        quad_sum(a, [65], 66)
        a("s_lshl_b32 s20, s25, 10")
        a("s_lshl_b32 s21, s18, 3")
        a("s_add_u32 s20, s20, s21")
        a(f"v_lshlrev_b32 v66, 6, v{VR}")
        a(f"v_cmp_gt_u32 vcc, 16, v{VLANE}")
        a("s_and_saveexec_b64 s[22:23], vcc")
        a("buffer_store_dwordx2 v[64:65], v66, s[68:71], s20 offen")
    else:
        B = 40
        for j in range(10):
            a(f"v_lshlrev_b32 v{B+2*j}, 16, v{EC+j}")
            a(f"v_and_b32 v{B+2*j+1}, 0xffff0000, v{EC+j}")
        for k in range(20):
            a(f"v_add_f32 v{k}, v{k}, v{B+k}")
        for k in range(20):
            a(f"v_fmac_f32 v{X+k}, v{EG+k}, v{k}")
        for j in range(10):
            a(f"v_cvt_pk_bf16_f32 v{60+j}, v{X+2*j}, v{X+2*j+1}")
        for c in range(5):
            a(f"buffer_store_dwordx2 v[{60+2*c}:{61+2*c}], v{VX}, s[52:55], s26 offen offset:{32*c}")
    endpgm(a, name, nst=3)
    a.label(f"{name}_end")
    a("s_endpgm")
    kernel_desc(a, name, vgpr=160 + 144, accum=160)
    if first:
        errs = a.check([name, f"{name}_red"])
    else:
        errs = a.check([name, f"{name}_last", f"{name}_red"]) + a.check([name, f"{name}_red"])
    return dict(name=name, grid=256, block=256, lds=61440), errs


def gen_t1(a):
    return gen_t14(a, "t1_kernel", True)


def gen_t4(a):
    return gen_t14(a, "t4_kernel", False)


def gen_t3(a, name="t3_kernel"):
    kernel_header(a, name)
    a("s_cmp_ge_u32 s2, 224")
    a(f"s_cbranch_scc1 {name}_end")
    stamp(a, 0)
    load_ptr(a, 50, "ws")
    VLANE, VL16, VA, VW, VRD = 64, 65, 66, 68, 70
    lane_wave(a, VLANE, 16, 65)
    a("s_and_b32 s17, s2, 7")
    a("s_lshl_b32 s17, s17, 1")
    a("s_lshr_b32 s18, s2, 3")
    a("s_and_b32 s19, s18, 1")
    a("s_add_u32 s17, s17, s19")
    a("s_lshr_b32 s18, s18, 1")
    a(f"v_lshlrev_b32 v{VL16}, 4, v{VLANE}")
    a("s_lshl_b32 s25, s17, 3")
    a("s_lshl_b32 s19, s16, 1")
    a("s_add_u32 s25, s25, s19")
    a("s_mul_i32 s20, s25, 20480")
    a(f"v_add_u32 v{VA}, s20, v{VL16}")
    a(f"v_add_u32 v{VA+1}, 20480, v{VA}")
    a("s_lshl_b32 s20, s18, 3")
    a("s_add_u32 s20, s20, s19")
    a("s_mul_i32 s20, s20, 20480")
    a(f"v_add_u32 v{VW}, s20, v{VL16}")
    a(f"v_add_u32 v{VW+1}, {20480-1024}, v{VW}")
    a("s_lshl_b32 s26, s16, 11")
    a("s_mov_b32 s24, 0")
    a("s_waitcnt lgkmcnt(0)")
    srd_ws(a, 8, 50, "xmf")
    srd_ws(a, 12, 50, "w1f")
    vm = VmTrack(a)

    def loads(ks):
        L = [dict(c=1, s=f"s_add_u32 m0, s26, {8192*ks}")]
        for n in range(2):
            L.append(dict(c=2, mem=1, cb=(lambda ks=ks: vm.issue(("W", ks))),
                          s=f"buffer_load_dwordx4 v{VW+n}, s[12:15], s24 offen offset:{1024*n} lds"))
        L[1]["after"] = L[0]
        L[1]["dist"] = 1
        for n in range(2):
            r = 8 * ks + 4 * n
            L.append(dict(c=2, mem=1, cb=(lambda ks=ks: vm.issue(("A", ks))),
                          s=f"buffer_load_dwordx4 a[{r}:{r+3}], v{VA+n}, s[8:11], s24 offen"))
        L.append(dict(c=1, s="s_add_u32 s24, s24, 1024", after=L[-1], dist=0))
        return L
    LEAD = 8
    for ks in range(LEAD):
        for it in loads(ks):
            if it.get("cb"):
                it["cb"]()
            a(it["s"])
            if "m0" in it["s"]:
                a("s_nop 0")
    for n in range(3):
        a(f"v_add_u32 v{VRD+n}, {65536*n}, v{VL16}")
    srd_ws(a, 52, 50, "stats")
    srd_ws(a, 56, 50, "cst")
    srd_ws(a, 60, 50, "uf")
    VQ, VS, VV = 73, 74, 75
    a(f"v_lshrrev_b32 v{VQ}, 4, v{VLANE}")
    a(f"v_and_b32 v{VS}, 15, v{VLANE}")
    a(f"v_lshlrev_b32 v{VS}, 6, v{VS}")
    a(f"v_lshlrev_b32 v{VV}, 4, v{VQ}")
    a(f"v_add_u32 v{VS}, v{VS}, v{VV}")
    a("s_lshl_b32 s27, s25, 10")
    a("s_lshl_b32 s28, s18, 9")
    a("s_add_u32 s29, s28, 6912")
    ST, CS, TT = 76, 84, 116
    epi = []

    def eld(s):
        epi.append(dict(c=2, mem=1, cb=(lambda: vm.issue("E")), s=s))
    for r in range(2):
        eld(f"buffer_load_dwordx4 v[{ST+4*r}:{ST+4*r+3}], v{VS}, s[52:55], s27 offen offset:{1024*r}")
    for fb in range(8):
        eld(f"buffer_load_dwordx4 v[{CS+4*fb}:{CS+4*fb+3}], v{VV}, s[56:59], s28 offen offset:{64*fb}")
        eld(f"buffer_load_dwordx4 v[{TT+4*fb}:{TT+4*fb+3}], v{VV}, s[56:59], s29 offen offset:{64*fb}")
    AW = 160

    def reads(ks):
        o = 8192 * ks
        return [f"ds_read_b128 a[{AW+32*(ks&1)+4*fb}:{AW+32*(ks&1)+4*fb+3}], v{VRD + o // 65536} offset:{o % 65536 + 1024*fb}"
                for fb in range(8)]
    a(vm.wait_text({("W", 0)}))
    a("s_barrier")
    stamp(a, 1)
    a(reads(0))
    for ks in range(20):
        mf = []
        for fb in range(8):
            for r in range(2):
                d = 32 * r + 4 * fb
                w = AW + 32 * (ks & 1) + 4 * fb
                mf.append([f"{MF} {R('v', d, 4)}, a[{w}:{w+3}], a[{8*ks+4*r}:{8*ks+4*r+3}], "
                           f"{'0' if ks == 0 else R('v', d, 4)}", []])
        need = {("A", ks)}
        if ks % 2 == 0:
            need |= {("W", ks + 1), ("W", ks + 2)}
        wt = vm.wait_text(need)
        mf[0][1].append("s_waitcnt lgkmcnt(0)" if wt is None else wt + " lgkmcnt(0)")
        if ks % 2 == 0:
            mf[1][1].append("s_barrier")
        rd = [dict(t=1 + j // 2, c=1, s=s, mem=1, pr=8) for j, s in enumerate(reads(ks + 1))] if ks < 19 else []
        if ks + LEAD < 20:
            ld = loads(ks + LEAD)
        else:
            ld, epi = epi[:4], epi[4:]
        for j, it in enumerate(ld):
            it["t"] = 1 + (j * 12) // len(ld)
        schedule(a, mf, [rd, ld])
    assert not epi
    stamp(a, 2)
    a("s_waitcnt vmcnt(0)")
    RS = 148
    for r in range(2):
        a(f"v_add_f32 v{RS+r}, v{ST+4*r}, v{ST+4*r+2}")
    quad_sum(a, [RS, RS + 1], RS + 4)
    for r in range(2):
        a(f"v_mul_f32 v{RS+r}, 0x3e000000, v{RS+r}")
        a(f"v_sub_f32 v{ST+4*r}, v{ST+4*r}, v{RS+r}")
        a(f"v_sub_f32 v{ST+4*r+2}, v{ST+4*r+2}, v{RS+r}")
        a(f"v_mul_f32 v{ST+4*r}, v{ST+4*r}, v{ST+4*r}")
        a(f"v_fmac_f32 v{ST+4*r}, v{ST+4*r+2}, v{ST+4*r+2}")
        a(f"v_add_f32 v{RS+2+r}, v{ST+4*r+1}, v{ST+4*r+3}")
        a(f"v_fmac_f32 v{RS+2+r}, {hex(f32bits(80.0))}, v{ST+4*r}")
    quad_sum(a, [RS + 2, RS + 3], RS + 4)
    for r in range(2):
        a(f"v_mov_b32 v{RS+4+r}, {hex(f32bits(1e-5))}")
        a(f"v_fmac_f32 v{RS+4+r}, {hex(f32bits(1/640))}, v{RS+2+r}")
        a(f"v_rsq_f32 v{RS+2+r}, v{RS+4+r}")
    a("s_mul_i32 s20, s25, 55296")
    a("s_lshl_b32 s21, s18, 12")
    a("s_add_u32 s20, s20, s21")
    a("s_add_u32 s21, s20, 55296")
    for r in range(2):
        a(f"v_mul_f32 v{RS+r}, v{RS+r}, v{RS+2+r}")
    T = 156
    n = 0
    for p in range(4):
        if p == 2:
            a("s_cmp_eq_u32 s18, 13")
            a(f"s_cbranch_scc1 {name}_done")
            a.label(f"{name}_e2")
        for r in range(2):
            d = T + 8 + 4 * (n % 2)
            for k in range(8):
                f = 8 * p + k
                a(f"v_fma_f32 v{T+k}, -v{RS+r}, v{CS+f}, v{TT+f}")
            for k in range(8):
                a(f"v_fmac_f32 v{T+k}, v{RS+2+r}, v{32*r+8*p+k}")
            for k in range(8):
                a(f"v_max_f32 v{T+k}, 0, v{T+k}")
            for k in range(8):
                a(f"v_mul_f32 v{T+k}, v{T+k}, v{T+k}")
            for k in range(4):
                a(f"v_cvt_pk_bf16_f32 v{d+k}, v{T+2*k}, v{T+2*k+1}")
            a(f"buffer_store_dwordx4 v[{d}:{d+3}], v{VL16}, s[60:63], s{20+r} offen offset:{1024*p}")
            n += 1
    a.label(f"{name}_done")
    endpgm(a, name, nst=3)
    a.label(f"{name}_end")
    a("s_endpgm")
    kernel_desc(a, name, vgpr=176 + 224, accum=176)
    errs = a.check([name, f"{name}_e2", f"{name}_done"])
    return dict(name=name, grid=224, block=256, lds=163840), errs
```

```python
import sys
from common import *
import k_prep, k_kv

HEADER = open("adaLN_cond__compressed_kv_cla__dense_activation_squared_relu__prompt.s.ref").read().split("; Override launch")[0]

def build(kernels, out):
    a = Asm()
    launches = []
    bad = False
    for g in kernels:
        info, errs = g(a)
        launches.append(info)
        for e in errs[:30]:
            print("CHECK:", e)
        if errs:
            bad = True
            print(f"{info['name']}: {len(errs)} check errors")
    txt = HEADER
    for l in launches:
        txt += f"; @launch kernel={l['name']} grid=({l['grid']},1,1) block=({l['block']},1,1) lds={l['lds']}\n"
    txt += '.amdgcn_target "amdgcn-amd-amdhsa--gfx950"\n' + a.text()
    open(out, "w").write(txt)
    print("wrote", out, len(txt), "bytes", "WITH ERRORS" if bad else "")

if __name__ == "__main__":
    out = sys.argv[1] if len(sys.argv) > 1 else "k.s"
    ks = [k_prep.gen_p0, k_prep.gen_p1, k_kv.gen_kv]
    try:
        import k_att
        ks.append(k_att.gen_att)
        import k_tail
        ks += [k_tail.gen_t1, k_tail.gen_t3, k_tail.gen_t4]
    except ImportError as e:
        print("skip:", e)
    build(ks, out)
```

```python
from common import *
from sched import *

S0, P0, NEGM, CM, Q0, BIAS, ET = 0, 64, 96, 112, 128, 192, 208
VL16, VK, VV, VT, VLANE = 216, 217, 218, 219, 220
AO, AL, AONE, ARING = 0, 128, 144, 192
S_W, S_H, S_I = 3, 4, 5
S_OFF, S_MASK, S_Z, S_CNT = 68, 69, 70, 71
SRD_K, SRD_V = 8, 12
BIG = 1e30


def kgroups(typ, half=0, adv=None, up=0):
    if typ == 1:
        return [dict(v=VK, off=up + half * 8192 + kb * 4096, adv=(adv if kb == 0 else None)) for kb in range(2)]
    return [dict(v=VK, off=up + kb * 4096, adv=(adv if kb == 0 else None)) for kb in range(4)]


def vgroups(typ, half=0, adv=None, up=0):
    if typ == 1:
        return [dict(v=VV, off=up + half * 8192 + j * 4096, adv=(adv if j == 0 else None)) for j in range(2)]
    return [dict(v=VV, offs=[up + o for o in (2 * j * 1024, 8192 + 2 * j * 1024, (2 * j + 1) * 1024,
                                              8192 + (2 * j + 1) * 1024)],
                 adv=(adv if j == 0 else None)) for j in range(4)]


def group_reads(grp, slot):
    offs = grp.get("offs") or [grp["off"] + 1024 * k for k in range(4)]
    out = []
    for k, o in enumerate(offs):
        r = ARING + 4 * ((slot + k) % 16)
        out.append(f"ds_read_b128 a[{r}:{r+3}], v{grp['v']} offset:{o}")
    pre = []
    if grp["adv"] == "exact":
        if grp["v"] == VK:
            pre = [f"v_add_u32 v{VK}, 16384, v{VK}", f"v_and_b32 v{VK}, 0xffff, v{VK}"]
        else:
            pre = [f"v_add_u32 v{VT}, 16384, v{VV}", f"v_bfi_b32 v{VV}, s{S_MASK}, v{VT}, v{VV}"]
    elif grp["adv"] == "xor":
        pre = [f"v_xor_b32 v{grp['v']}, 0x8000, v{grp['v']}"]
    return pre, out


def dma_items(k=True, v=True):
    L = [item(f"s_and_b32 m0, s{S_OFF}, 0xffff")]
    if k:
        for n in range(4):
            L.append(item(f"buffer_load_dwordx4 v{VL16}, s[{SRD_K}:{SRD_K+3}], s{S_OFF} offen offset:{1024*n} lds", 2, mem=1))
    if v:
        L.append(item("s_xor_b32 m0, m0, 0x18000"))
        for n in range(4):
            L.append(item(f"buffer_load_dwordx4 v{VL16}, s[{SRD_V}:{SRD_V+3}], s{S_OFF} offen offset:{1024*n} lds", 2, mem=1))
    L.append(item(f"s_add_u32 s{S_OFF}, s{S_OFF}, 16384"))
    for n in range(1, len(L)):
        if "m0" in L[n - 1]["s"] and L[n].get("mem"):
            L[n]["after"] = L[n - 1]
            L[n]["dist"] = 1
    return L


def iteration(a, par, pos, qk=None, sm=None, pv=None, nxt=(), bar=None, dma=None, extra=(), name=""):
    mf, groups, gstart, cmitems = [], [], [], []
    if qk:
        sb = S0 + 32 * (par ^ 1)
        nkb = 2 if qk["typ"] == 1 else 4
        mask = qk.get("mask")
        gs = list(qk["gs"])
        if mask:
            gs = [g for g in gs if g != mask[0]] + [mask[0]]
        for kb in range(nkb):
            slot = pos + 4 * len(groups)
            groups.append(qk["groups"][kb])
            gstart.append(len(mf))
            for g in gs:
                blk = kb * 4 + g if qk["typ"] == 1 else kb * 2 + (g - 2)
                d = sb + 4 * blk
                for sg in range(4):
                    if sg:
                        c = R("v", d, 4)
                    elif mask and g == mask[0]:
                        kk = mask[1] + kb
                        c = R("v", CM + 4 * kk, 4)
                        for t in range(4):
                            dst, bi, ng = CM + 4 * kk + t, BIAS + 4 * kk + t, NEGM + 4 * g + t
                            if qk.get("czero"):
                                s = f"v_mul_f32 v{dst}, s{S_Z}, v{bi}"
                            elif mask[2]:
                                s = f"v_fma_f32 v{dst}, s{S_Z}, v{bi}, v{ng}"
                            else:
                                s = f"v_add_f32 v{dst}, v{bi}, v{ng}"
                            cmitems.append(item(s, need=len(mf)))
                    elif qk.get("czero"):
                        c = "0"
                    else:
                        c = R("v", NEGM + 4 * g, 4)
                    r = ARING + 4 * ((slot + sg) % 16)
                    q = Q0 + 16 * g + 4 * sg
                    mf.append([f"{MF} {R('v', d, 4)}, a[{r}:{r+3}], v[{q}:{q+3}], {c}", []])
    nqk = len(mf)
    if pv:
        pb = P0 + 16 * (par ^ 1)
        ones = []
        if pv["typ"] == 1:
            for g in pv["gs"]:
                ones.append(f"{MF} {R('a', AL+4*g, 4)}, {R('a', AONE, 4)}, {R('v', pb+4*g, 4)}, {R('a', AL+4*g, 4)}")
            for j in range(2):
                slot = pos + 4 * len(groups)
                groups.append(pv["groups"][j])
                gstart.append(len(mf))
                for k in range(4):
                    db = 4 * j + k
                    r = ARING + 4 * ((slot + k) % 16)
                    for g in pv["gs"]:
                        o = AO + 32 * g + 4 * db
                        mf.append([f"{MF} {R('a', o, 4)}, a[{r}:{r+3}], {R('v', pb+4*g, 4)}, {R('a', o, 4)}", []])
        else:
            for g in pv["gs"]:
                for tau in range(2):
                    f = (g - 2) * 2 + tau
                    ones.append(f"{MF} {R('a', AL+4*g, 4)}, {R('a', AONE, 4)}, {R('v', pb+4*f, 4)}, {R('a', AL+4*g, 4)}")
            for j in range(4):
                slot = pos + 4 * len(groups)
                groups.append(pv["groups"][j])
                gstart.append(len(mf))
                for k in range(2):
                    db = 2 * j + k
                    for g in pv["gs"]:
                        o = AO + 32 * g + 4 * db
                        for tau in range(2):
                            r = ARING + 4 * ((slot + 2 * k + tau) % 16)
                            f = (g - 2) * 2 + tau
                            mf.append([f"{MF} {R('a', o, 4)}, a[{r}:{r+3}], {R('v', pb+4*f, 4)}, {R('a', o, 4)}", []])
        for s in ones:
            mf.append([s, []])
    n = len(mf)
    ng = len(groups)
    allg = groups + list(nxt)
    rd = []
    gend = gstart[1:] + [n]
    barg = nqk if (qk and pv) else 0
    for k in range(ng):
        nout = 4 if k + 1 < len(allg) else 0
        mf[gstart[k]][1].append(f"s_waitcnt lgkmcnt({nout})")
        if k + 2 < len(allg):
            pre, rs = group_reads(allg[k + 2], pos + 4 * (k + 2))
            span = gend[k] - gstart[k]
            g0 = gstart[k]
            for p in pre:
                rd.append(item(p, t=gend[k] - 501, e=max(0, g0 - span // 2), d=gend[k] - 1))
            for j, s in enumerate(rs):
                rd.append(item(s, t=gend[k] - 501, e=g0, d=gend[k] - 1, mem=1))
    streams = [rd]
    if bar is not None:
        if barg == 0:
            mf[0][1].insert(0, f"s_waitcnt vmcnt({bar}) lgkmcnt(0)")
            mf[0][1].insert(1, "s_barrier")
        else:
            streams.append([item([f"s_waitcnt vmcnt({bar})", "s_barrier"], 2, t=-1000, e=barg - 1, d=barg - 1)])
    if dma:
        spread(dma, barg, n - 3)
        for it in dma:
            it["e"] = it["t"] if it["c"] == 2 else barg
            it["t"] -= 100
        streams.append(dma)
    early = [it for it in cmitems if it["need"] < 4]
    for it in early:
        a(it["s"])
    if early:
        a("s_nop 1")
    late = [it for it in cmitems if it["need"] >= 4]
    for it in late:
        it["e"] = max(0, it["need"] - 10)
        it["d"] = it["need"] - 2
        it["t"] = it["d"] - 500
    streams.append(late)
    if sm:
        sb = S0 + 32 * par
        pb = P0 + 16 * par
        ex, cv, frs = [], [], []
        if sm["typ"] == 1:
            for g in sm["gs"]:
                frs.append((g, [g, 4 + g]))
        else:
            for g in sm["gs"]:
                for tau in range(2):
                    frs.append(((g - 2) * 2 + tau, [(2 * tau) * 2 + g - 2, (2 * tau + 1) * 2 + g - 2]))
        k = 0
        for f, blks in frs:
            for hb, blk in enumerate(blks):
                for t in range(4):
                    it = item(f"v_exp_f32 v{ET + k % 8}, v{sb + 4*blk + t}", 2, t=-10)
                    if k >= 8:
                        it["after"] = cv[(k - 8) // 2]
                        it["dist"] = 0
                    ex.append(it)
                    if t & 1:
                        cv.append(item(f"v_cvt_pk_bf16_f32 v{pb + 4*f + 2*hb + t//2}, v{ET + (k-1) % 8}, v{ET + k % 8}",
                                       t=-20, after=it, dist=1))
                    k += 1
        streams += [cv, ex]
    ex2 = list(extra)
    if ex2:
        for it in ex2:
            it.setdefault("t", -5)
        streams.append(ex2)
    over = schedule(a, mf, streams)
    if over:
        print(f"  iteration {name}: overflow {over} slots (n={n})")
    return (pos + 4 * ng) % 16
```

```python
from common import *
from sched import *
from att2 import VL16, VLANE, S_W, S_H, S_I
import mega
from mega import P, FL, F_S4, F_S5, F_S6, SWS, items, quad_red, OPT

SG, SJ, SRB, SCG = 68, 69, 70, 71
SK = 32
VA, VW5 = 224, 228
VQ, VR, VX, VVEC = 233, 234, 235, 236
VD = 237
VFL, VPL = 241, 242
X1 = 244
VONE = 223


def tile_addrs(a, KS):
    for r in range(4):
        a(f"s_add_u32 s6, s{S_W}, {r}")
        a("s_and_b32 s6, s6, 3")
        a(f"s_andn2_b32 s7, s{SRB}, 3")
        a("s_add_u32 s6, s6, s7")
        a(f"s_mul_i32 s6, s6, {KS*1024}")
        a(f"v_add_u32 v{VA+r}, s6, v{VL16}")
    a(f"s_mul_i32 s6, s{SCG}, {5*KS*1024}")
    for c in range(5):
        a(f"v_add_u32 v{VW5+c}, s6, v{VL16}")
        a(f"s_add_u32 s6, s6, {KS*1024}")


def reduce_scatter(a):
    for r in range(1, 4):
        for c in range(5):
            d = 20 * r + 4 * c
            a(f"ds_write_b128 v{VD+r-1}, v[{d}:{d+3}] offset:{1024*c}")
    a("s_waitcnt lgkmcnt(0)")
    a("s_barrier")
    for r in range(1, 4):
        for c in range(5):
            d = 20 * r + 4 * c
            a(f"ds_read_b128 v[{d}:{d+3}], v{VD+3} offset:{(r-1)*5120 + 1024*c}")
    for r in range(1, 4):
        a(f"s_waitcnt lgkmcnt({5*(3-r)})")
        for k in range(0, 20, 2):
            a(f"v_pk_add_f32 v[{k}:{k+1}], v[{k}:{k+1}], v[{20*r+k}:{20*r+k+1}]")


def tail(G, vm, VPA, VF3, VONE_):
    a = G.a
    assert VONE_ == VONE
    a("s_and_b32 s6, s2, 7")
    a("s_lshl_b32 s6, s6, 1")
    a("s_bfe_u32 s7, s2, 0x10003")
    a(f"s_add_u32 s{SG}, s6, s7")
    a(f"s_lshr_b32 s{SJ}, s2, 4")
    a(f"s_and_b32 s6, s{SJ}, 1")
    a("s_lshl_b32 s6, s6, 2")
    a(f"s_lshl_b32 s{SRB}, s{SG}, 3")
    a(f"s_add_u32 s{SRB}, s{SRB}, s6")
    a(f"s_add_u32 s{SRB}, s{SRB}, s{S_W}")
    a(f"s_lshr_b32 s{SCG}, s{SJ}, 1")
    tile_addrs(a, 128)
    srd_ws(a, 8, SWS, "ctxf")
    srd_ws(a, 12, SWS, "wof")
    a(f"s_lshl_b32 s{SK}, s{S_W}, 15")
    a(vm.wait({"pa"}))
    G.poll_check(VPA, VF3, SWS, 8)
    NR, NL = 12, 8
    SWK = 33

    def w_reg(s, slot):
        L = []
        for c in range(5):
            r = 20 * slot + 4 * c
            L.append(vitem(vm, ("W", s), f"buffer_load_dwordx4 a[{r}:{r+3}], v{VW5+c}, s[12:15], s{SWK} offen offset:{1024*(s % 4)}"))
        if s % 4 == 3:
            L.append(item(f"s_add_u32 s{SWK}, s{SWK}, 4096"))
        return L
    a(f"s_mov_b32 s{SWK}, s{SK}")
    pre = []
    for s in range(NR):
        pre += w_reg(s, s)
    a(f"s_mul_i32 s34, s{S_W}, 40960")
    for half in range(2):
        for c in range(5):
            m = item(f"s_add_u32 m0, s34, {8192*c + 4096*half}")
            pre.append(m)
            for k in range(4):
                it = vitem(vm, ("W", NR + 4 * half + k), f"buffer_load_dwordx4 v{VW5+c}, s[12:15], s{SWK} offen offset:{1024*k} lds")
                if k == 0:
                    it["after"], it["dist"] = m, 1
                pre.append(it)
        pre.append(item(f"s_add_u32 s{SWK}, s{SWK}, 4096"))
    n1 = OPT.get("t1pre", 40)
    cut = [n for n, it in enumerate(pre) if it["c"] == 2][n1]
    flat(a, pre[:cut])
    a(f"v_lshrrev_b32 v{VQ}, 4, v{VLANE}")
    a(f"v_and_b32 v{VR}, 15, v{VLANE}")
    a(f"v_mul_u32_u24 v{VX}, 1280, v{VR}")
    a(f"v_lshl_add_u32 v{VX}, v{VQ}, 3, v{VX}")
    a(f"v_lshlrev_b32 v{VVEC}, 4, v{VQ}")
    for r in range(1, 4):
        a(f"s_add_u32 s6, s{S_W}, {r}")
        a("s_and_b32 s6, s6, 3")
        a("s_mul_i32 s6, s6, 15360")
        a(f"s_add_u32 s6, s6, {(r-1)*5120}")
        a(f"v_add_u32 v{VD+r-1}, s6, v{VL16}")
    a(f"s_mul_i32 s6, s{S_W}, 15360")
    a(f"v_add_u32 v{VD+3}, s6, v{VL16}")
    VWL = 243
    a(f"v_add_u32 v{VWL}, s34, v{VL16}")
    a(f"s_lshl_b32 s6, s{S_I}, 2")
    a(f"s_lshr_b32 s7, s{S_H}, 3")
    a("s_add_u32 s6, s6, s7")
    a("s_lshl_b32 s6, s6, 8")
    a(f"s_add_u32 s6, s6, {FL + 256*F_S4}")
    a(f"v_mov_b32 v{VFL}, s6")
    a(vm.wait({"C"}))
    a("s_barrier")
    G.arrive_w0(VFL, VONE, SWS)
    G.stamp(7)
    a(f"s_sub_u32 s6, 15, s{SG}")
    a(f"s_min_u32 s6, s6, s{SG}")
    a("s_lshl_b32 s6, s6, 2")
    a(f"s_add_u32 s6, s6, s{S_W}")
    a("s_lshl_b32 s6, s6, 8")
    a(f"s_add_u32 s6, s6, {FL + 256*F_S4}")
    a(f"v_mov_b32 v{VFL}, s6")
    rest = pre[cut:]
    cnt = n1
    prev = None
    for it in rest:
        if it["c"] == 2:
            cnt += 1
            if len(vm.q) >= 56:
                a("s_waitcnt vmcnt(40)")
                vm.q = vm.q[-40:]
        if prev is not None and it.get("after") is prev:
            a("s_nop 0")
        emit(a, it)
        prev = it
    a(G.poll_text(VPL, VFL, SWS))
    SRM, SVO = 35, 48
    a(f"s_mul_i32 s{SRM}, s{SRB}, 20480")
    a(f"s_mul_i32 s6, s{SCG}, 160")
    a(f"s_add_u32 s{SRM}, s{SRM}, s6")
    a(f"s_mul_i32 s{SVO}, s{SCG}, 320")
    srd_in(a, 16, P("x"), SZ["x"])
    srd_ws(a, 20, SWS, "modf", 17920)
    a("s_waitcnt vmcnt(0)")
    vm.q = []
    G.poll_check(VPL, VFL, SWS, 8)
    G.stamp(8)
    AR, NA, WS2 = 80, 4, 144

    def act(s, KSC=" sc1"):
        L = []
        for r in range(4):
            b = AR + 16 * (s % NA) + 4 * r
            L.append(vitem(vm, ("A", s), f"buffer_load_dwordx4 v[{b}:{b+3}], v{VA+r}, s[8:11], s{SK} offen offset:{1024*(s % 4)}{KSC}"))
        if s % 4 == 3:
            L.append(item(f"s_add_u32 s{SK}, s{SK}, 4096"))
        return L
    for s in range(NA - 1):
        flat(a, act(s))
    wq = []
    for s in range(NR + NL, 32):
        L = w_reg(s, s - NR - NL)
        for it in L:
            it["free"] = s - NR - NL + 1
        wq += L
    EX, EG, EC = 184, 144, 164
    epi = []
    a(f"s_add_u32 s42, s{SVO}, {2*2560}")
    a(f"s_add_u32 s43, s{SVO}, {4*2560}")
    for c in range(5):
        epi.append(vitem(vm, "E", f"buffer_load_dwordx2 v[{EX+2*c}:{EX+2*c+1}], v{VX}, s[16:19], s{SRM} offen offset:{32*c}"))
        epi.append(vitem(vm, "E", f"buffer_load_dwordx4 v[{EG+4*c}:{EG+4*c+3}], v{VVEC}, s[20:23], s42 offen offset:{64*c} sc1"))
        epi.append(vitem(vm, "E", f"buffer_load_dwordx4 v[{EC+4*c}:{EC+4*c+3}], v{VVEC}, s[20:23], s43 offen offset:{64*c} sc1"))
    nw = sum(1 for it in wq if it["c"] == 2)
    done = 0
    for s in range(32):
        def wreg(c):
            if s < NR:
                return R("a", 20 * s + 4 * c, 4)
            if s < NR + NL:
                return R("v", WS2 + 20 * (s & 1) + 4 * c, 4)
            return R("a", 20 * (s - NR - NL) + 4 * c, 4)
        mf = []
        for c in range(5):
            for r in range(4):
                d = 20 * r + 4 * c
                b = AR + 16 * (s % NA) + 4 * r
                mf.append([f"{MF} {R('v', d, 4)}, {wreg(c)}, v[{b}:{b+3}], {'0' if s == 0 else R('v', d, 4)}", []])
        inl = NR <= s < NR + NL
        a(vm.wait({("A", s), ("W", s)}, lgkm=(0 if inl else None)))
        if s == 24:
            a("s_barrier")
        ld = act(s + NA - 1) if s + NA - 1 < 32 else []
        tgt = min(nw, ((s + 0) * nw) // 26) if s >= 1 else 0
        while wq and (done < tgt or wq[0]["c"] == 1) and wq[0]["free"] <= s:
            it = wq.pop(0)
            done += it["c"] == 2
            ld.append(it)
        if s >= 28:
            k = 5 if s < 30 else len(epi)
            ld += epi[:k]
            epi = epi[k:]
        spread(ld, 0, 19)
        rd = []
        if NR <= s + 1 < NR + NL:
            k = s + 1 - NR
            rd = spread(items([f"ds_read_b128 v[{WS2+20*((s+1)&1)+4*c}:{WS2+20*((s+1)&1)+4*c+3}], v{VWL} offset:{8192*c + 1024*k}"
                               for c in range(5)], mem=1), 0, 8)
        schedule(a, mf, [rd, ld])
    assert not wq and not epi
    G.stamp(9)
    VW1 = VW5
    srd_ws(a, 12, SWS, "w1f")
    a(f"s_lshl_b32 s6, s{SJ}, 3")
    a(f"s_lshl_b32 s7, s{S_W}, 1")
    a("s_add_u32 s49, s6, s7")
    a("s_mul_i32 s6, s49, 20480")
    a(f"v_add_u32 v{VW1}, s6, v{VL16}")
    a(f"v_add_u32 v{VW1+1}, 20480, v{VW1}")
    a(f"s_mov_b32 s{SWK}, 0")
    w1 = []
    for ks in range(20):
        for n in range(2):
            r = 8 * ks + 4 * n
            w1.append(vitem(vm, "W1", f"buffer_load_dwordx4 a[{r}:{r+3}], v{VW1+n}, s[12:15], s{SWK} offen offset:{1024*(ks % 4)}"))
        if ks % 4 == 3:
            w1.append(item(f"s_add_u32 s{SWK}, s{SWK}, 4096"))
    n1 = OPT.get("w1pre", 24)
    cut = [n for n, it in enumerate(w1) if it["c"] == 2][n1] if n1 < 40 else len(w1)
    flat(a, w1[:cut])
    reduce_scatter(a)
    a(vm.wait({"E"}))
    X = 20
    for j in range(10):
        a(f"v_lshlrev_b32 v{X+2*j}, 16, v{EX+j}")
        a(f"v_and_b32 v{X+2*j+1}, 0xffff0000, v{EX+j}")
    for k in range(0, 20, 2):
        a(f"v_pk_fma_f32 v[{X+k}:{X+k+1}], v[{EG+k}:{EG+k+1}], v[{k}:{k+1}], v[{X+k}:{X+k+1}]")
    for j in range(10):
        a(f"v_cvt_pk_bf16_f32 v{X1+j}, v{X+2*j}, v{X+2*j+1}")
    for j in range(10):
        a(f"v_lshlrev_b32 v{X+2*j}, 16, v{X1+j}")
        a(f"v_and_b32 v{X+2*j+1}, 0xffff0000, v{X1+j}")
    for k in range(0, 20, 2):
        a(f"v_pk_mul_f32 v[{k}:{k+1}], v[{X+k}:{X+k+1}], v[{EC+k}:{EC+k+1}]")
    XM = 52
    for j in range(10):
        a(f"v_cvt_pk_bf16_f32 v{XM+j}, v{2*j}, v{2*j+1}")
    srd_ws(a, 8, SWS, "xmf")
    a(f"s_mul_i32 s6, s{SCG}, 5")
    a("s_lshr_b32 s6, s6, 1")
    a("s_lshl_b32 s6, s6, 10")
    a(f"s_mul_i32 s7, s{SRB}, 20480")
    a("s_add_u32 s6, s6, s7")
    a(f"s_bitcmp1_b32 s{SCG}, 0")
    a("s_cbranch_scc1 Lxmodd")
    a(f"buffer_store_dwordx4 v[{XM}:{XM+3}], v{VL16}, s[8:11], s6 offen sc1")
    a(f"buffer_store_dwordx4 v[{XM+4}:{XM+7}], v{VL16}, s[8:11], s6 offen offset:1024 sc1")
    a(f"buffer_store_dwordx2 v[{XM+8}:{XM+9}], v{VL16}, s[8:11], s6 offen offset:2048 sc1")
    a("s_branch Lxmdone")
    G.label("Lxmodd", rec=False)
    a(f"buffer_store_dwordx2 v[{XM}:{XM+1}], v{VL16}, s[8:11], s6 offen offset:8 sc1")
    a(f"buffer_store_dwordx4 v[{XM+2}:{XM+5}], v{VL16}, s[8:11], s6 offen offset:1024 sc1")
    a(f"buffer_store_dwordx4 v[{XM+6}:{XM+9}], v{VL16}, s[8:11], s6 offen offset:2048 sc1")
    G.label("Lxmdone")
    for _ in range(3):
        vm.issue("X")
    for k in range(2, 20, 2):
        a(f"v_pk_add_f32 v[64:65], v[{X if k == 2 else 64}:{X+1 if k == 2 else 65}], v[{X+k}:{X+k+1}]")
    a("v_add_f32 v64, v64, v65")
    a(quad_red("v_add_f32", [64], 66))
    a(f"v_mul_f32 v64, {hex(f32bits(1/80))}, v64")
    for k in range(20):
        a(f"v_sub_f32 v{X+k}, v{X+k}, v64")
    a(f"v_pk_mul_f32 v[66:67], v[{X}:{X+1}], v[{X}:{X+1}]")
    for k in range(2, 20, 2):
        a(f"v_pk_fma_f32 v[66:67], v[{X+k}:{X+k+1}], v[{X+k}:{X+k+1}], v[66:67]")
    a("v_add_f32 v65, v66, v67")
    a(quad_red("v_add_f32", [65], 66))
    srd_ws(a, 16, SWS, "stats")
    a(f"s_lshl_b32 s6, s{SRB}, 10")
    a(f"s_lshl_b32 s7, s{SCG}, 3")
    a("s_add_u32 s6, s6, s7")
    a(f"v_lshlrev_b32 v66, 6, v{VR}")
    a("s_mov_b64 exec, 0xffff")
    a("buffer_store_dwordx2 v[64:65], v66, s[16:19], s6 offen sc1")
    vm.issue("X")
    a("s_mov_b64 exec, -1")
    a(vm.wait({"W1"}))
    flat(a, w1[cut:])
    VEC = 80
    a(f"v_lshrrev_b32 v68, 3, v{VR}")
    a("v_mul_u32_u24 v68, 1280, v68")
    a(f"v_add_u32 v68, v68, v{VVEC}")
    a("s_mov_b32 s42, 15360")
    for ks in range(20):
        a(f"buffer_load_dwordx4 v[{VEC+4*ks}:{VEC+4*ks+3}], v68, s[20:23], s42 offen offset:{64*ks} sc1")
        vm.issue("V")
    srd_in(a, 24, P("b1"), SZ["b1"])
    a(f"v_lshlrev_b32 v69, 3, v{VQ}")
    a("s_lshl_b32 s6, s49, 5")
    for n in range(2):
        a(f"buffer_load_dwordx2 v[{70+2*n}:{71+2*n}], v69, s[24:27], s6 offen offset:{32*n}")
        vm.issue("V")
    a(f"s_lshl_b32 s6, s{SG}, 8")
    a(f"s_add_u32 s6, s6, {FL + 256*F_S5}")
    a(f"v_mov_b32 v{VFL}, s6")
    a(vm.wait({"X"}))
    a("s_barrier")
    G.arrive_w0(VFL, VONE, SWS)
    a(f"s_cmp_ge_u32 s{SJ}, 14")
    a("s_cbranch_scc1 Lt4pre")
    pA, pB = G.paths
    G.paths = [pA]
    G.label("Lt3")
    a("s_waitcnt vmcnt(0)")
    vm.q = []
    a(G.poll_text(VPL, VFL, SWS))
    CS, TT = 160, 168
    for ks in range(20):
        for n in range(2):
            a(f"{MF} v[{CS+4*n}:{CS+4*n+3}], a[{8*ks+4*n}:{8*ks+4*n+3}], v[{VEC+4*ks}:{VEC+4*ks+3}], "
              f"{'0' if ks == 0 else R('v', CS+4*n, 4)}")
    VXM, VRD, VS = VA, VA + 2, 74
    a(f"s_lshl_b32 s6, s{SG}, 3")
    a(f"s_lshl_b32 s7, s{S_W}, 1")
    a("s_add_u32 s6, s6, s7")
    a("s_mul_i32 s6, s6, 20480")
    a(f"v_add_u32 v{VXM}, s6, v{VL16}")
    a(f"v_add_u32 v{VXM+1}, {20480-1024}, v{VXM}")
    RDV = [VL16, VRD, VRD + 1]
    a(f"v_add_u32 v{VRD}, 65536, v{VL16}")
    a(f"v_add_u32 v{VRD+1}, 131072, v{VL16}")
    a(f"s_lshl_b32 s34, s{S_W}, 11")
    a(f"s_mov_b32 s{SK}, 0")
    a(f"v_lshlrev_b32 v{VS}, 6, v{VLANE}")
    a(f"s_lshl_b32 s42, s{SG}, 13")
    a("s_add_u32 s43, s42, 4096")
    a("s_waitcnt vmcnt(0)")
    G.poll_check(VPL, VFL, SWS, 16)
    G.stamp(10)

    def xm_dma(ks):
        m = item(f"s_add_u32 m0, s34, {8192*ks}")
        L = [m]
        for n in range(2):
            L.append(vitem(vm, ("A", ks), f"buffer_load_dwordx4 v{VXM+n}, s[8:11], s{SK} offen offset:{1024*n} sc1 lds"))
        L[1]["after"], L[1]["dist"] = m, 1
        L.append(item(f"s_add_u32 s{SK}, s{SK}, 1024"))
        return L
    LEAD = 9
    for ks in range(LEAD):
        flat(a, xm_dma(ks))
    STT = 80
    for b in range(2):
        for k in range(4):
            a(f"buffer_load_dwordx4 v[{STT+16*b+4*k}:{STT+16*b+4*k+3}], v{VS}, s[16:19], s{42+b} offen offset:{16*k} sc1")
            vm.issue("S")
    a(f"v_cmp_gt_u32 vcc, 8, v{VR}")
    a("s_nop 0")
    for k in range(8):
        a(f"v_mov_b32_dpp v76, v{CS+k} row_ror:8 row_mask:0xf bank_mask:0xf")
        a(f"v_cndmask_b32 v{TT+k}, v{CS+k}, v76, vcc")
        a(f"v_cndmask_b32 v{CS+k}, v76, v{CS+k}, vcc")
        src = 70 + (k >> 1)
        a(f"v_lshlrev_b32 v77, 16, v{src}" if k % 2 == 0 else f"v_and_b32 v77, 0xffff0000, v{src}")
        a(f"v_add_f32 v{TT+k}, v{TT+k}, v77")
    AW = 160

    def reads(ks):
        o = 8192 * ks
        return [f"ds_read_b128 a[{AW+32*(ks&1)+4*r}:{AW+32*(ks&1)+4*r+3}], v{RDV[o // 65536]} offset:{o % 65536 + 1024*r}"
                for r in range(8)]
    RM, RSD = 112, 120
    sv = []
    for b in range(2):
        B = STT + 16 * b
        m, v, t = RM + 4 * b, RSD + 4 * b, 128
        sv.append(f"v_add_f32 v{m}, v{B}, v{B+2}")
        sv += [f"v_add_f32 v{m}, v{m}, v{B+2*k}" for k in range(2, 8)]
        sv.append(f"v_mul_f32 v{m}, 0x3e000000, v{m}")
        sv += [f"v_sub_f32 v{B+2*k}, v{B+2*k}, v{m}" for k in range(8)]
        sv.append(f"v_mul_f32 v{t}, v{B}, v{B}")
        sv += [f"v_fmac_f32 v{t}, v{B+2*k}, v{B+2*k}" for k in range(1, 8)]
        sv.append(f"v_add_f32 v{v}, v{B+1}, v{B+3}")
        sv += [f"v_add_f32 v{v}, v{v}, v{B+2*k+1}" for k in range(2, 8)]
        sv += [f"v_fmac_f32 v{v}, {hex(f32bits(80.0))}, v{t}", f"v_mov_b32 v{t}, {hex(f32bits(1e-5))}",
               f"v_fmac_f32 v{t}, {hex(f32bits(1/640))}, v{v}"]
        sv.append([f"v_rsq_f32 v{v}, v{t}", "s_nop 0"])
        sv.append(f"v_mul_f32 v{m}, v{m}, v{v}")
        for x in (m, v):
            sv.append([f"v_mov_b32 v{x+2}, v{x}", "s_nop 1"])
            sv.append(f"v_permlane32_swap_b32 v{x}, v{x+2}")
            sv.append(f"v_mov_b32 v{x+1}, v{x}")
            sv.append([f"v_mov_b32 v{x+3}, v{x+2}", "s_nop 1"])
            sv.append(f"v_permlane16_swap_b32 v{x}, v{x+1}")
            sv.append(f"v_permlane16_swap_b32 v{x+2}, v{x+3}")
    sv = [item(s, 2 if isinstance(s, list) else 1) for s in sv]
    a(vm.wait({("A", 0)}))
    a("s_barrier")
    a(reads(0))
    for ks in range(20):
        mf = []
        for r in range(8):
            for n in range(2):
                d = 8 * r + 4 * n
                w = AW + 32 * (ks & 1) + 4 * r
                mf.append([f"{MF} {R('v', d, 4)}, a[{8*ks+4*n}:{8*ks+4*n+3}], a[{w}:{w+3}], "
                           f"{'0' if ks == 0 else R('v', d, 4)}", []])
        need = set()
        if ks % 2 == 0:
            need |= {("A", ks + 1), ("A", ks + 2)}
        if ks == 10:
            need.add("S")
        a(vm.wait(need, lgkm=0))
        a(mf.pop(0)[0])
        if ks % 2 == 0:
            a("s_barrier")
        rd = spread(items(reads(ks + 1), mem=1), 0, 4) if ks < 19 else []
        ld = spread(xm_dma(ks + LEAD), 3, 12) if ks + LEAD < 20 else []
        ex = []
        if ks >= 10:
            k = (len(sv) + 19 - ks) // (20 - ks)
            ex, sv = sv[:k], sv[k:]
            spread(ex, 2, 13)
        schedule(a, mf, [rd, ld, ex])
    G.stamp(11)
    W2V = 176

    def t4_setup():
        tile_addrs(a, 54)
        srd_ws(a, 12, SWS, "w2f")
        a(f"s_mul_i32 s{SK}, s{S_W}, 14")
        a(f"s_cmp_eq_u32 s{S_W}, 3")
        a(f"s_cselect_b32 s{SK}, 41, s{SK}")
        a(f"s_lshl_b32 s{SK}, s{SK}, 10")
        a(f"s_mov_b32 s{SWK}, s{SK}")

    def w2reg(s, c):
        f = 5 * s + c
        return R("a", 4 * f, 4) if f < 64 else R("v", W2V + 4 * (f - 64), 4)

    def w2_loads(vm):
        L = []
        for s in range(14):
            for c in range(5):
                L.append(vitem(vm, "W2", f"buffer_load_dwordx4 {w2reg(s, c)}, v{VW5+c}, s[12:15], s{SWK} offen offset:{1024*(s % 4)}"))
            if s % 4 == 3:
                L.append(item(f"s_add_u32 s{SWK}, s{SWK}, 4096"))
        return L
    t4_setup()
    w2 = w2_loads(vm)
    n2 = OPT.get("w2pre", 20)
    cut = [n for n, it in enumerate(w2) if it["c"] == 2][n2]
    flat(a, w2[:cut])
    srd_ws(a, 8, SWS, "uf")
    a(f"s_lshl_b32 s6, s{SJ}, 2")
    a(f"s_add_u32 s6, s6, s{S_W}")
    a("s_cmp_lt_u32 s6, 54")
    a("s_cselect_b32 s10, s10, 0")
    a("s_lshl_b32 s6, s6, 10")
    a(f"s_mul_i32 s7, s{SG}, {8*55296}")
    a("s_add_u32 s42, s6, s7")
    T = 128
    for r in range(8):
        d = T + 8 + 4 * (r % 2)
        rm, rs = RM + r, RSD + r
        for k in range(8):
            a(f"v_fma_f32 v{T+k}, -v{rm}, v{CS+k}, v{TT+k}")
        for k in range(8):
            a(f"v_fmac_f32 v{T+k}, v{rs}, v{8*r+k}")
        for k in range(8):
            a(f"v_max_f32 v{T+k}, 0, v{T+k}")
        for k in range(0, 8, 2):
            a(f"v_pk_mul_f32 v[{T+k}:{T+k+1}], v[{T+k}:{T+k+1}], v[{T+k}:{T+k+1}]")
        for k in range(4):
            a(f"v_cvt_pk_bf16_f32 v{d+k}, v{T+2*k}, v{T+2*k+1}")
        a(f"buffer_store_dwordx4 v[{d}:{d+3}], v{VL16}, s[8:11], s42 offen sc1")
        vm.issue("U")
        a("s_add_u32 s42, s42, 55296")
    cut2 = [n for n, it in enumerate(w2) if it["c"] == 2][n2 + 32]
    flat(a, w2[cut:cut2])
    a(f"v_add_u32 v{VFL}, {256*(F_S6 - F_S5)}, v{VFL}")
    a(vm.wait({"U"}))
    a("s_barrier")
    G.arrive_w0(VFL, VONE, SWS)
    flat(a, w2[cut2:])
    a("s_branch Lt4")
    G.paths = [pB]
    G.label("Lt4pre")
    a("s_waitcnt vmcnt(0)")
    t4_setup()
    vm = VmTrack()
    w2 = w2_loads(vm)
    flat(a, w2[:40])
    a("s_waitcnt vmcnt(16)")
    flat(a, w2[40:])
    a(f"v_add_u32 v{VFL}, {256*(F_S6 - F_S5)}, v{VFL}")
    G.paths = [pA, pB]
    G.label("Lt4")
    a(G.poll_text(VPL, VFL, SWS))
    srd_ws(a, 8, SWS, "uf")
    srd_in(a, 16, P("out"), SZ["out"])
    srd_in(a, 24, P("b2"), SZ["b2"])
    a(f"s_add_u32 s42, s{SVO}, {5*2560}")
    a(f"s_mul_i32 s43, s{SCG}, 160")
    a(f"v_lshlrev_b32 v254, 3, v{VQ}")
    a("s_waitcnt vmcnt(0)")
    G.poll_check(VPL, VFL, SWS, 14)
    G.stamp(12)
    vm = VmTrack()
    NA = 6

    def act4(s):
        L = []
        for r in range(4):
            b = AR + 16 * (s % NA) + 4 * r
            L.append(vitem(vm, ("A", s), f"buffer_load_dwordx4 v[{b}:{b+3}], v{VA+r}, s[8:11], s{SK} offen offset:{1024*(s % 4)} sc1"))
        if s % 4 == 3:
            L.append(item(f"s_add_u32 s{SK}, s{SK}, 4096"))
        if s == 12:
            L.append(item([f"s_cmp_ge_u32 s{S_W}, 2", f"s_cselect_b32 s{SK}, 0x40000000, s{SK}"], 2))
        return L
    for s in range(NA - 1):
        flat(a, act4(s))
    EG, EB = AR + 32, 200
    epi = []
    for c in range(5):
        epi.append(vitem(vm, "E", f"buffer_load_dwordx4 v[{EG+4*c}:{EG+4*c+3}], v{VVEC}, s[20:23], s42 offen offset:{64*c} sc1"))
        epi.append(vitem(vm, "E", f"buffer_load_dwordx2 v[{EB+2*c}:{EB+2*c+1}], v254, s[24:27], s43 offen offset:{32*c}"))
    for s in range(14):
        mf = []
        for c in range(5):
            for r in range(4):
                d = 20 * r + 4 * c
                b = AR + 16 * (s % NA) + 4 * r
                mf.append([f"{MF} {R('v', d, 4)}, {w2reg(s, c)}, v[{b}:{b+3}], {'0' if s == 0 else R('v', d, 4)}", []])
        if s == 13:
            a(f"s_cmp_ge_u32 s{S_W}, 2")
            a("s_cbranch_scc1 Lt4red")
            G.paths = [pA]
            G.label("Lt4last")
        a(vm.wait({("A", s)}))
        ld = act4(s + NA - 1) if s + NA - 1 < 14 else []
        if s in (10, 11):
            ld, epi = epi[:5], epi[5:]
        schedule(a, mf, [spread(ld, 0, 12)])
    G.paths = [pA, pB]
    G.label("Lt4red")
    a("s_nop 7")
    reduce_scatter(a)
    a("s_waitcnt vmcnt(0)")
    B = 40
    for j in range(10):
        a(f"v_lshlrev_b32 v{X+2*j}, 16, v{X1+j}")
        a(f"v_and_b32 v{X+2*j+1}, 0xffff0000, v{X1+j}")
        a(f"v_lshlrev_b32 v{B+2*j}, 16, v{EB+j}")
        a(f"v_and_b32 v{B+2*j+1}, 0xffff0000, v{EB+j}")
    for k in range(0, 20, 2):
        a(f"v_pk_add_f32 v[{k}:{k+1}], v[{k}:{k+1}], v[{B+k}:{B+k+1}]")
    for k in range(0, 20, 2):
        a(f"v_pk_fma_f32 v[{X+k}:{X+k+1}], v[{EG+k}:{EG+k+1}], v[{k}:{k+1}], v[{X+k}:{X+k+1}]")
    for j in range(10):
        a(f"v_cvt_pk_bf16_f32 v{60+j}, v{X+2*j}, v{X+2*j+1}")
    for c in range(5):
        a(f"buffer_store_dwordx2 v[{60+2*c}:{61+2*c}], v{VX}, s[16:19], s{SRM} offen offset:{32*c}")
    G.end()
```

```python
class VmTrack:
    def __init__(self, q=None):
        self.q = list(q or [])

    def issue(self, tag):
        self.q.append(tag)

    def count(self, tags):
        last = max((n for n, t in enumerate(self.q) if t in tags), default=-1)
        if last < 0:
            return None
        n = len(self.q) - 1 - last
        self.q = self.q[last + 1:]
        assert n <= 63, n
        return n

    def wait(self, tags, lgkm=None):
        n = self.count(tags)
        parts = []
        if n is not None:
            parts.append(f"vmcnt({n})")
        if lgkm is not None:
            parts.append(f"lgkmcnt({lgkm})")
        return "s_waitcnt " + " ".join(parts) if parts else []


def item(s, c=1, **kw):
    d = dict(s=s, c=c)
    d.update(kw)
    return d


def vitem(vm, tag, s, **kw):
    return item(s, 2, mem=1, cb=(lambda: vm.issue(tag)), **kw)


def emit(a, it):
    if it.get("cb"):
        it["cb"]()
    s = it["s"]
    if callable(s):
        s = s()
    a(s)


def flat(a, L):
    prev = None
    for it in L:
        if prev is not None and it.get("after") is prev and it.get("dist", 1) >= 1:
            a(f"s_nop {it.get('nop', 0)}")
        emit(a, it)
        prev = it


def spread(L, g0, g1):
    tot = sum(i["c"] for i in L) or 1
    acc = 0
    for it in L:
        it["t"] = g0 + (acc * (g1 - g0)) // tot
        it.setdefault("e", g0)
        acc += it["c"]
    return L


def schedule(a, mfmas, streams, base=2):
    n = len(mfmas)
    streams = [s for s in streams if s]
    total = sum(i["c"] for s in streams for i in s)
    while total > base * n:
        base += 1
    idx = [0] * len(streams)
    left = total

    def heads(g, budget):
        out = []
        for si, s in enumerate(streams):
            if idx[si] >= len(s):
                continue
            it = s[idx[si]]
            if it.get("e", 0) > g or it["c"] > budget:
                continue
            if it.get("pin") and it["t"] > g:
                continue
            af = it.get("after")
            if af is not None and (af.get("g") is None or g < af["g"] + it.get("dist", 1)):
                continue
            out.append((it.get("t", 0), si, it))
        out.sort(key=lambda x: (x[0], x[1]))
        return out

    for g, (m, prei) in enumerate(mfmas):
        for p in prei:
            a(p() if callable(p) else p)
        a(m)
        budget = base
        chosen = []

        def take(si, it):
            nonlocal budget, left
            it["g"] = g
            idx[si] += 1
            budget -= it["c"]
            left -= it["c"]
            chosen.append((si, it))
        while True:
            h = heads(g, budget)
            z = [x for x in h if x[2]["c"] == 0 and x[0] <= g]
            if z:
                take(z[0][1], z[0][2])
                continue
            h = [x for x in h if x[2]["c"] > 0]
            if not h:
                break
            tight = left >= base * (n - g) - 3
            due = [x for x in h if x[0] <= g]
            if budget % 2 == 1 or budget < 2:
                c1 = [x for x in h if x[2]["c"] == 1]
                if c1:
                    take(c1[0][1], c1[0][2])
                    continue
                if budget < 2:
                    break
            cand = due if due else (h if tight else [])
            if not cand:
                break
            t0, si, it = cand[0]
            if it["c"] == 1 and not it.get("pin"):
                idx[si] += 1
                it["g"] = g
                partner = [x for x in heads(g, budget - 1) if x[2]["c"] == 1]
                idx[si] -= 1
                it["g"] = None
                c2 = [x for x in (h if tight else due) if x[2]["c"] == 2]
                urgent = it.get("d") is not None and it["d"] <= g + 1
                if not partner and c2 and not urgent:
                    t0, si, it = c2[0]
            take(si, it)
        front, rest = [], []
        for si, it in chosen:
            if it.get("mem") and not any(sj == si or it.get("after") is jt for sj, jt in rest):
                front.append((si, it))
            else:
                rest.append((si, it))
        for si, it in front + rest:
            emit(a, it)
    over = 0
    more = True
    while more:
        more = False
        for si, s in enumerate(streams):
            while idx[si] < len(s):
                it = s[idx[si]]
                af = it.get("after")
                if af is not None and af.get("g") is None:
                    more = True
                    break
                if af is not None and it.get("dist", 1) >= 1 and af["g"] + it.get("dist", 1) > n - 1:
                    a(f"s_nop {it.get('nop', 0)}")
                it["g"] = n
                idx[si] += 1
                over += it["c"]
                emit(a, it)
    for s in streams:
        for it in s:
            if it.get("d") is not None:
                assert it["g"] <= it["d"], ("deadline missed", it, n)
    return over
```

```python
import os
from common import *
from sched import *
from att2 import *

LOG2E = 1.4426950408889634
NAME = "adaLN_cond__compressed_kv_cla__dense_activation_squared_relu__prompt_kernel"
SPIN = 200000
FL = WS["flags"][0]
F_S2, F_S3, F_S4, F_S5, F_S6 = 0, 8, 40, 72, 88
SWS, SDBG = 66, 64
OPT = dict(prefetch=1)
for kv in os.environ.get("OPT", "").split(","):
    if "=" in kv:
        k_, v_ = kv.split("=")
        OPT[k_] = int(v_)


def P(name):
    return 36 + KA[name] // 4


class Gen:
    def __init__(self):
        self.a = Asm()
        self.paths = [[]]
        self.uid = 0
        self.nst = 0

    def label(self, l, rec=True):
        self.a.label(l)
        if rec:
            for p in self.paths:
                p.append(l)

    def newlab(self, s):
        self.uid += 1
        return f"L{s}{self.uid}"

    def stamp(self, n):
        if TIMING:
            self.a("s_memrealtime s[94:95]")
            self.a("s_waitcnt lgkmcnt(0)")
            self.a(f"s_mov_b32 s{80+n}, s94")

    def end(self):
        a = self.a
        if TIMING:
            a("s_waitcnt vmcnt(0) lgkmcnt(0)")
            self.stamp(13)
            a("s_mov_b64 exec, -1")
            srd_ws(a, 96, SWS, "tim")
            a("v_mov_b32 v0, 0")
            for n in range(14):
                a(f"v_writelane_b32 v0, s{80+n}, {n}")
            a("v_mbcnt_lo_u32_b32 v1, -1, 0")
            a("v_mbcnt_hi_u32_b32 v1, -1, v1")
            a("v_cmp_gt_u32 vcc, 16, v1")
            a("v_lshlrev_b32 v1, 2, v1")
            a("s_lshl_b32 s100, s2, 2")
            a(f"s_add_u32 s100, s100, s{S_W}")
            a("s_lshl_b32 s100, s100, 6")
            a("s_and_b64 exec, exec, vcc")
            a("buffer_store_dword v0, v1, s[96:99], s100 offen")
        a("s_endpgm")

    def arrive_text(self, vaddr, vone, sbase):
        return ["s_mov_b64 exec, 1", f"global_atomic_add v{vaddr}, v{vone}, s[{sbase}:{sbase+1}] sc1",
                "s_mov_b64 exec, -1"]

    def arrive_w0(self, vaddr, vone, sbase):
        a = self.a
        l = self.newlab("arr")
        a(f"s_cmp_lg_u32 s{S_W}, 0")
        a(f"s_cbranch_scc1 {l}")
        a(self.arrive_text(vaddr, vone, sbase))
        self.label(l)

    def poll_text(self, vdst, vaddr, sbase):
        return f"global_load_dword v{vdst}, v{vaddr}, s[{sbase}:{sbase+1}] sc1"

    def poll_check(self, vdst, vaddr, sbase, target):
        a = self.a
        ok, lp = self.newlab("ok"), self.newlab("sp")
        a(f"v_cmp_gt_u32 vcc, {target}, v{vdst}")
        a("s_mov_b32 s6, 0")
        a("s_cmp_eq_u64 vcc, 0")
        a(f"s_cbranch_scc1 {ok}")
        self.label(lp)
        a(self.poll_text(vdst, vaddr, sbase))
        a("s_waitcnt vmcnt(0)")
        a(f"v_cmp_gt_u32 vcc, {target}, v{vdst}")
        a("s_add_u32 s6, s6, 1")
        a(f"s_cmp_gt_u32 s6, {SPIN}")
        a(f"s_cbranch_scc1 {ok}")
        a("s_cmp_lg_u64 vcc, 0")
        a(f"s_cbranch_scc1 {lp}")
        for p in self.paths:
            p.pop()
        self.label(ok)


def round_pair(d0, d1, tmp):
    return [f"v_cvt_pk_bf16_f32 v{tmp}, v{d0}, v{d1}", f"v_lshlrev_b32 v{d0}, 16, v{tmp}",
            f"v_and_b32 v{d1}, 0xffff0000, v{tmp}"]


def items(L, **kw):
    return [item(s, **kw) for s in L]


def acc_kv(x, y):
    b = x * 8 + y
    return ("v", 4 * b) if b < 32 else ("a", 4 * (b - 32))


def quad_red(op, regs, tmp):
    L = []
    for sw in ("32", "16"):
        L += [f"v_mov_b32 v{tmp+n}, v{r}" for n, r in enumerate(regs)]
        L.append("s_nop 1")
        L += [f"v_permlane{sw}_swap_b32 v{r}, v{tmp+n}" for n, r in enumerate(regs)]
        L += [f"{op} v{r}, v{r}, v{tmp+n}" for n, r in enumerate(regs)]
    return L


VC, VW, VCR, VWR = 192, 196, 200, 204
SPARE = 131072


def gen(G):
    a = G.a
    kernel_header(a, NAME)
    G.paths[0].append(NAME)
    a("s_cmp_ge_u32 s2, 256")
    a("s_cbranch_scc1 Lend")
    if TIMING:
        a("s_memrealtime s[94:95]")
    a("s_load_dwordx16 s[36:51], s[0:1], 0")
    a("s_load_dwordx16 s[52:67], s[0:1], 64")
    SC0, SW0, SLB, SOUT, SSY, SSP = 68, 70, 32, 33, 34, 35
    VWA = [204 + k for k in range(8)]
    VWB = [212, 213, 214, 215, 217, 218, 221, 222]
    VPOLL, VONE = 219, 223
    a(f"v_lshrrev_b32 v128, 6, v0")
    a(f"v_and_b32 v{VLANE}, 63, v0")
    a(f"v_readfirstlane_b32 s{S_W}, v128")
    a(f"s_and_b32 s{S_H}, s2, 7")
    a(f"s_lshl_b32 s{S_H}, s{S_H}, 2")
    a(f"s_lshr_b32 s{S_I}, s2, 3")
    a(f"s_and_b32 s{S_I}, s{S_I}, 3")
    a(f"s_add_u32 s{S_H}, s{S_H}, s{S_I}")
    a(f"s_lshr_b32 s{S_I}, s2, 5")
    a(f"v_lshlrev_b32 v{VL16}, 4, v{VLANE}")
    a(f"v_lshrrev_b32 v129, 4, v{VLANE}")
    a("s_mul_i32 s72, s2, 1093")
    a("s_lshr_b32 s72, s72, 16")
    a("s_mul_i32 s73, s72, 60")
    a("s_sub_u32 s73, s2, s73")
    a(f"v_and_b32 v130, 15, v{VLANE}")
    a("v_min_u32 v130, 4, v130")
    a("v_lshlrev_b32 v130, 6, v130")
    a("v_lshl_add_u32 v130, v129, 4, v130")
    a(f"v_lshrrev_b32 v132, 3, v{VLANE}")
    a("v_mul_u32_u24 v131, 7680, v132")
    a(f"v_and_b32 v133, 7, v{VLANE}")
    a("v_lshl_add_u32 v131, v133, 4, v131")
    a("s_mul_i32 s74, s72, 160")
    a(f"s_mul_i32 s75, s{S_W}, 40")
    a("s_add_u32 s75, s75, s74")
    a("s_mul_i32 s75, s75, 7680")
    a("s_lshl_b32 s6, s73, 7")
    a("s_add_u32 s75, s75, s6")
    a("s_lshl_b32 s74, s74, 1")
    a(f"s_mul_i32 s76, s{S_W}, 5120")
    a(f"s_add_u32 s76, s76, {SPARE}")
    a("v_lshlrev_b32 v132, 10, v132")
    a("v_xor_b32 v133, v133, v129")
    a(f"v_lshl_add_u32 v{VC}, v133, 4, v132")
    a(f"v_xor_b32 v{VC+1}, 64, v{VC}")
    a(f"v_add_u32 v{VC+1}, {8192-1024}, v{VC+1}")
    a(f"v_add_u32 v{VC+2}, {2*(8192-1024)}, v{VC}")
    a(f"v_add_u32 v{VC+3}, {2*(8192-1024)}, v{VC+1}")
    a(f"v_lshrrev_b32 v133, 1, v{VLANE}")
    a("v_and_b32 v133, 7, v133")
    a("v_xor_b32 v133, v133, v129")
    a("v_lshlrev_b32 v133, 5, v133")
    a(f"v_and_b32 v134, 1, v{VLANE}")
    a("v_lshl_add_u32 v133, v134, 4, v133")
    a(f"v_lshl_add_u32 v{VW}, v129, 13, v133")
    a(f"v_add_u32 v{VW+1}, {32768-1024}, v{VW}")
    a(f"v_xor_b32 v{VW+2}, 128, v{VW}")
    a(f"v_add_u32 v{VW+3}, {3*(32768-1024)}, v{VW+2}")
    a(f"v_add_u32 v{VW+2}, {2*(32768-1024)}, v{VW+2}")
    a(f"s_lshl_b32 s{SC0}, s{S_I}, 18")
    a(f"s_lshl_b32 s6, s{S_W}, 16")
    a(f"s_add_u32 s{SC0}, s{SC0}, s6")
    a(f"s_add_u32 s{SC0+1}, s{SC0}, 32768")
    a(f"s_and_b32 s7, s{S_W}, 1")
    a(f"s_lshl_b32 s{SW0}, s7, 18")
    a(f"s_lshl_b32 s6, s{S_H}, 8")
    a(f"s_add_u32 s{SW0}, s{SW0}, s6")
    a(f"s_add_u32 s{SW0+1}, s{SW0}, 131072")
    a(f"s_lshl_b32 s{SLB}, s{S_W}, 13")
    a("s_waitcnt lgkmcnt(0)")
    if TIMING:
        a("s_mov_b32 s80, s94")
        for n in range(1, 14):
            a(f"s_mov_b32 s{80+n}, 0")
    vm = VmTrack()
    srd_in(a, 24, P("c"), SZ["c"])
    a("buffer_load_dwordx4 v[136:139], v130, s[24:27], s74 offen")
    vm.issue("c")
    srd_in(a, 16, P("wmod"), SZ["wmod"])
    for n in range(5):
        a(f"s_add_u32 m0, s76, {1024*n}")
        a(f"s_add_u32 s6, s75, {8*7680*n}")
        a("buffer_load_dwordx4 v131, s[16:19], s6 offen lds")
        vm.issue("G")
    srd_in(a, 8, P("ckv"), SZ["ckv"])
    a(f"s_cmp_ge_u32 s{S_W}, 2")
    a(f"s_cselect_b32 s12, s{P('wuv')}, s{P('wuk')}")
    a(f"s_cselect_b32 s13, s{P('wuv')+1}, s{P('wuk')+1}")
    a("s_and_b32 s13, s13, 0xffff")
    a(f"s_mov_b32 s14, {SZ['wuk']}")
    a("s_mov_b32 s15, 0x20000")

    def dma_tile(vm, t):
        st = (t & 1) * 65536
        L = []
        for (vb, srd, so, lo) in ((VC, 8, SC0, 0), (VW, 12, SW0, 32768)):
            for half in range(2):
                m = item(f"s_add_u32 m0, s{SLB}, {st + lo + half*4096}")
                L.append(m)
                for n in range(4):
                    it = vitem(vm, ("T", t), f"buffer_load_dwordx4 v{vb+n}, s[{srd}:{srd+3}], s{so+half} offen offset:{1024*n} lds")
                    if n == 0:
                        it["after"], it["dist"] = m, 1
                    L.append(it)
        L += items([f"s_add_u32 s{SC0}, s{SC0}, 128", f"s_add_u32 s{SC0+1}, s{SC0+1}, 128",
                    f"s_add_u32 s{SW0}, s{SW0}, {64*8192}", f"s_add_u32 s{SW0+1}, s{SW0+1}, {64*8192}"])
        return L
    flat(a, dma_tile(vm, 0))
    flat(a, dma_tile(vm, 1))
    a(f"v_mov_b32 v{VONE}, 1")
    a("s_mul_i32 s6, s72, 20")
    a("s_add_u32 s6, s6, s73")
    a("s_lshl_b32 s6, s6, 8")
    a(f"s_add_u32 s6, s6, {FL}")
    a(f"v_mul_u32_u24 v134, {80*256}, v{VLANE}")
    a("v_add_u32 v134, s6, v134")
    a("v_mov_b32 v135, 0")
    a("s_cmp_lt_u32 s73, 20")
    a("s_cselect_b32 s77, 0, 128")
    a("s_cselect_b32 s6, 0, 1")
    a(f"s_or_b32 s6, s6, s{S_W}")
    a("s_lshr_b32 s7, s72, 2")
    a("s_or_b32 s6, s6, s7")
    a("s_cmp_lg_u32 s6, 0")
    a("s_cbranch_scc1 Lnozero")
    a("s_mov_b64 exec, 3")
    a(f"global_store_dword v134, v135, s[{SWS}:{SWS+1}] sc1")
    a("s_mov_b64 exec, -1")
    G.label("Lnozero")
    a(f"s_lshl_b32 s6, s{S_I}, 4")
    a(f"s_add_u32 s6, s6, s{S_H}")
    a(f"s_sub_u32 s7, 14, s{S_I}")
    a("s_lshl_b32 s7, s7, 4")
    a(f"s_add_u32 s7, s7, s{S_H}")
    a(f"s_cmp_lt_u32 s{S_H}, 16")
    a("s_cselect_b32 s6, s6, s7")
    a("s_lshl_b32 s6, s6, 1")
    a(f"s_and_b32 s7, s{S_W}, 1")
    a("s_add_u32 s6, s6, s7")
    a("s_mul_i32 s78, s6, 5120")
    a(f"v_and_b32 v134, 15, v{VLANE}")
    a("v_lshrrev_b32 v135, 1, v134")
    a("v_xor_b32 v135, v135, v129")
    a("v_lshlrev_b32 v135, 4, v135")
    a("v_lshl_add_u32 v135, v134, 7, v135")
    a(f"s_and_b32 s7, s{S_W}, 1")
    a("s_lshl_b32 s6, s7, 14")
    a(f"v_add_u32 v{VCR}, s6, v135")
    a(f"v_xor_b32 v{VCR+1}, 64, v{VCR}")
    a(f"v_add_u32 v{VCR+2}, 65536, v{VCR}")
    a(f"v_add_u32 v{VCR+3}, 65536, v{VCR+1}")
    a(f"v_lshrrev_b32 v134, 2, v{VLANE}")
    a("v_and_b32 v135, 3, v134")
    a("v_lshl_add_u32 v135, v129, 3, v135")
    a(f"v_and_b32 v142, 3, v{VLANE}")
    a("v_lshlrev_b32 v142, 3, v142")
    a("v_lshl_add_u32 v143, v135, 7, v142")
    a("v_lshl_add_u32 v135, v135, 8, v142")
    a("v_and_b32 v134, 7, v134")
    a("v_lshl_add_u32 v135, v134, 5, v135")
    a(f"s_lshr_b32 s6, s{S_W}, 1")
    a("s_lshl_b32 s6, s6, 14")
    a("s_add_u32 s6, s6, 32768")
    a("v_add_u32 v135, s6, v135")
    for db in range(8):
        a(f"v_xor_b32 v{VWA[db]}, {32*db}, v135")
        a(f"v_add_u32 v{VWB[db]}, 65536, v{VWA[db]}")
    a(f"s_cmp_ge_u32 s{S_W}, 2")
    a(f"s_mov_b32 s6, {WS['kf'][0]}")
    a(f"s_cselect_b32 s6, {WS['vf'][0]}, s6")
    a(f"s_mov_b32 s{SSY}, 4096")
    a(f"s_cselect_b32 s{SSY}, 1024, s{SSY}")
    a(f"s_mov_b32 s{SSP}, 1024")
    a(f"s_cselect_b32 s{SSP}, 8192, s{SSP}")
    a(f"s_add_u32 s28, s{SWS}, s6")
    a(f"s_addc_u32 s29, s{SWS+1}, 0")
    a("s_and_b32 s29, s29, 0xffff")
    a(f"s_mov_b32 s30, {1 << 24}")
    a("s_mov_b32 s31, 0x20000")
    a(f"s_lshl_b32 s{SOUT}, s{S_H}, 19")
    a(f"s_lshl_b32 s6, s{S_I}, 16")
    a(f"s_add_u32 s{SOUT}, s{SOUT}, s6")
    a("s_lshl_b32 s6, s7, 15")
    a(f"s_add_u32 s{SOUT}, s{SOUT}, s6")
    srd_ws(a, 20, SWS, "modp")
    a(vm.wait({"c"}))
    for j in range(4):
        a(f"v_lshlrev_b32 v{144+2*j}, 16, v{136+j}")
        a(f"v_and_b32 v{145+2*j}, 0xffff0000, v{136+j}")
    for j in range(8):
        a(f"v_mul_f32 v{152+j}, {hex(f32bits(-LOG2E))}, v{144+j}")
    for j in range(8):
        a(f"v_exp_f32 v{152+j}, v{152+j}")
    for j in range(8):
        a(f"v_add_f32 v{152+j}, 1.0, v{152+j}")
    for j in range(8):
        a(f"v_rcp_f32 v{152+j}, v{152+j}")
    for j in range(8):
        a(f"v_mul_f32 v{152+j}, v{144+j}, v{152+j}")
    for j in range(4):
        a(f"v_cvt_pk_bf16_f32 v{136+j}, v{152+2*j}, v{153+2*j}")
    a(f"s_lshl_b32 s6, s{S_W}, 9")
    a(f"s_add_u32 s6, s6, {SPARE + 20480}")
    a("v_add_u32 v130, s6, v130")
    a("ds_write_b128 v130, v[136:139]")
    a("v_lshl_add_u32 v130, v129, 4, s6")
    a(f"s_lshl_b32 s6, s{S_W}, 5")
    a(f"s_add_u32 s6, s6, {SPARE}")
    a("v_add_u32 v143, s6, v143")
    a(vm.wait({"G"}, lgkm=0))
    a("s_barrier")
    for ks in range(5):
        a(f"ds_read_b128 v[{144+4*ks}:{147+4*ks}], v130 offset:{64*ks}")
        a(f"ds_read_b64_tr_b16 v[{164+4*ks}:{165+4*ks}], v143 offset:{4096*ks}")
        a(f"ds_read_b64_tr_b16 v[{166+4*ks}:{167+4*ks}], v143 offset:{4096*ks+512}")
    a("s_mul_i32 s6, s72, 15360")
    a("s_lshl_b32 s7, s73, 8")
    a("s_add_u32 s6, s6, s7")
    a(f"s_lshl_b32 s7, s{S_W}, 6")
    a("s_add_u32 s6, s6, s7")
    a(f"v_lshlrev_b32 v134, 2, v{VLANE}")
    a("s_waitcnt lgkmcnt(0)")
    for ks in range(5):
        a(f"{MF} v[184:187], v[{144+4*ks}:{147+4*ks}], v[{164+4*ks}:{167+4*ks}], {'0' if ks == 0 else 'v[184:187]'}")
    a("s_nop 7")
    a("s_mov_b64 exec, 0xffff")
    a("buffer_store_dword v184, v134, s[20:23], s6 offen sc1")
    vm.issue("P")
    a("s_mov_b64 exec, -1")
    if OPT["prefetch"]:
        a(f"v_and_b32 v134, 15, v{VLANE}")
        a("v_lshlrev_b32 v134, 10, v134")
        a("v_lshl_add_u32 v134, v129, 7, v134")
        a(f"s_and_b32 s6, s{S_H}, 3")
        a("s_lshl_b32 s6, s6, 2")
        a(f"s_add_u32 s6, s6, s{S_W}")
        a("s_lshl_b32 s6, s6, 14")
        a(f"s_lshl_b32 s7, s{S_I}, 18")
        a("s_add_u32 s6, s6, s7")
        a("buffer_load_dword v140, v134, s[8:11], s6 offen offset:256")
        vm.issue("pf")
        a(f"v_lshrrev_b32 v135, 3, v{VLANE}")
        a("v_min_u32 v135, 5, v135")
        a("v_lshlrev_b32 v135, 19, v135")
        a(f"v_lshrrev_b32 v141, 1, v{VLANE}")
        a("v_and_b32 v141, 3, v141")
        a("v_lshl_add_u32 v135, v141, 13, v135")
        a(f"v_and_b32 v141, 1, v{VLANE}")
        a("v_lshl_add_u32 v135, v141, 7, v135")
        a(f"s_lshl_b32 s7, s{S_I}, 1")
        a(f"s_and_b32 s48, s{S_W}, 1")
        a("s_add_u32 s7, s7, s48")
        a("s_lshl_b32 s7, s7, 15")
        a(f"s_lshl_b32 s48, s{S_H}, 8")
        a("s_add_u32 s7, s7, s48")
        a(f"s_add_u32 s7, s7, {2 << 19}")
        a("buffer_load_dword v140, v135, s[12:15], s7 offen")
        vm.issue("pf")
        a("v_and_b32 v134, 0xfffffeff, v134")
        a("buffer_load_dword v140, v134, s[8:11], s6 offen offset:768")
        vm.issue("pf")
    a(f"s_cmp_ge_u32 s{S_W}, 2")
    a("s_cbranch_scc1 LkvV")

    SWQ, SLQ, SHO = 58, 59, 42
    SBLK = 72
    SRD_WQ, SRD_H = 16, 76
    VWD, VH = VW, VW + 2
    VQR = VWA
    HSLOT = [("v", 224), ("v", 240), ("a", 160), ("a", 176), ("a", 224), ("a", 240)]
    AWB = [128, 192]

    def w_dma(vm, ks):
        m = item(f"s_add_u32 m0, s{SLQ}, {8192*((ks + 4) & 7)}")
        L = [m]
        for n in range(2):
            L.append(vitem(vm, ("W", ks), f"buffer_load_dwordx4 v{VWD+n}, s[{SRD_WQ}:{SRD_WQ+3}], s{SWQ} offen offset:{1024*n} lds"))
        L[1]["after"], L[1]["dist"] = m, 1
        L.append(item(f"s_add_u32 s{SWQ}, s{SWQ}, {32*8192}"))
        return L

    def h_load(vm, ks):
        L = []
        f, b = HSLOT[ks % 6]
        for g in range(4):
            L.append(vitem(vm, ("H", ks), f"buffer_load_dwordx4 {R(f, b+4*g, 4)}, v{VH}, s[{SRD_H}:{SRD_H+3}], s{SHO+g} offen offset:{256*(ks % 16)} sc1"))
            if ks == 15:
                L.append(item(f"s_add_u32 s{SHO+g}, s{SHO+g}, 4096"))
        return L

    def wq_reads(ks):
        L = []
        o = 8192 * ((ks + 4) & 7)
        for db in range(8):
            r = AWB[ks & 1] + 4 * db
            L.append(f"ds_read_b64_tr_b16 a[{r}:{r+1}], v{VQR[db]} offset:{o}")
            L.append(f"ds_read_b64_tr_b16 a[{r+2}:{r+3}], v{VQR[db]} offset:{o+1024}")
        return L

    def srd_items(f, *args):
        t = Asm()
        t.cur = None
        f(t, *args)
        return items([l.strip() for l in t.lines])

    def qsetup_scalar():
        L = srd_items(srd_in, SRD_WQ, P("wq"), SZ["wq"]) + srd_items(srd_ws, SRD_H, SWS, "hf")
        S = [f"s_lshl_b32 s{SBLK}, s{S_I}, 3", f"s_add_u32 s{SBLK}, s{SBLK}, s{S_W}", f"s_add_u32 s{SBLK+1}, s{SBLK}, 4",
             f"s_sub_u32 s{SBLK+2}, 15, s{S_I}", f"s_lshl_b32 s{SBLK+2}, s{SBLK+2}, 3",
             f"s_add_u32 s{SBLK+2}, s{SBLK+2}, s{S_W}", f"s_add_u32 s{SBLK+3}, s{SBLK+2}, 4"]
        S += [f"s_mul_i32 s{SHO+g}, s{SBLK+g}, 20480" for g in range(4)]
        S += [f"s_lshl_b32 s{SWQ}, s{S_W}, 16", f"s_lshl_b32 s{SLQ}, s{S_H}, 8", f"s_add_u32 s{SWQ}, s{SWQ}, s{SLQ}",
              f"s_lshl_b32 s{SLQ}, s{S_W}, 11", f"s_add_u32 s{SLQ}, s{SLQ}, 98304"]
        out = []
        for it in L:
            if it["s"].startswith("s_addc"):
                out[-1] = item([out[-1]["s"], it["s"]], 2)
            else:
                out.append(it)
        return out + items(S)

    def glue(L):
        out = []
        for it in L:
            s = it["s"]
            if isinstance(s, str) and s.startswith(("s_addc", "s_cselect")):
                p = out[-1]["s"]
                p = p if isinstance(p, list) else [p]
                out[-1] = item(p + [s], 2)
            else:
                out.append(it)
        return out

    ST = 128

    def kv_reads(ks, isV):
        t, k = ks >> 1, ks & 1
        st = t & 1
        base = ST + 64 * (ks & 1)
        cb = base + (0 if isV else 32)
        wb = base + (32 if isV else 0)
        Lc = [f"ds_read_b128 a[{cb+4*y}:{cb+4*y+3}], v{VCR+2*st+k} offset:{2048*y}" for y in range(8)]
        Lw = []
        for db in range(8):
            v = (VWB if st else VWA)[db]
            Lw.append(f"ds_read_b64_tr_b16 a[{wb+4*db}:{wb+4*db+1}], v{v} offset:{8192*k}")
            Lw.append(f"ds_read_b64_tr_b16 a[{wb+4*db+2}:{wb+4*db+3}], v{v} offset:{8192*k+1024}")
        return (Lw + Lc) if isV else (Lc + Lw)

    vm0 = list(vm.q)
    path0 = list(G.paths[0])
    endq = []
    allpaths = []
    for isV in (False, True):
        vm = VmTrack(vm0)
        G.paths = [list(path0)]
        G.label("LkvV" if isV else "LkvK")
        side = {k: dict(pre=[], post=[], need=set(), code=None, bar=False) for k in range(16)}
        XN, MA = 128, [168 + 4 * k for k in range(6)] + [224 + 4 * k for k in range(6)]
        if not isV:
            srd_in(a, 24, P("x"), SZ["x"])
            a(f"v_and_b32 v252, 3, v{VLANE}")
            a("v_mul_u32_u24 v252, 1280, v252")
            a(f"v_lshrrev_b32 v253, 2, v{VLANE}")
            a("v_lshl_add_u32 v252, v253, 4, v252")
            for n in range(5):
                a(f"buffer_load_dwordx4 v[{MA[n]}:{MA[n]+3}], v252, s[24:27], s78 offen offset:{256*n}")
                vm.issue("X")
            a(f"v_lshlrev_b32 v253, 5, v253")
            a(f"v_add_u32 v253, {SPARE}, v253")
            side[3]["need"].add("X")
            L = []
            for n in range(5):
                for j in range(4):
                    L += [f"v_lshlrev_b32 v{XN+8*n+2*j}, 16, v{MA[n]+j}", f"v_and_b32 v{XN+8*n+2*j+1}, 0xffff0000, v{MA[n]+j}"]
            L.append(f"v_add_f32 v248, v{XN}, v{XN+1}")
            L += [f"v_add_f32 v248, v248, v{XN+j}" for j in range(2, 40)]

            def rowred(r):
                o = []
                for sh in (4, 8):
                    o.append(item(["s_nop 1", f"v_add_f32_dpp v{r}, v{r}, v{r} row_ror:{sh} row_mask:0xf bank_mask:0xf"], 2))
                for sw in ("32", "16"):
                    o.append(item([f"v_mov_b32 v250, v{r}", "s_nop 1"], 2))
                    o.append(item([f"v_permlane{sw}_swap_b32 v{r}, v250", f"v_add_f32 v{r}, v{r}, v250"], 2))
                return o
            side[3]["post"] = items(L[:60])
            L2 = items(L[60:]) + rowred(248) + items([f"v_mul_f32 v248, {hex(f32bits(1/640))}, v248"])
            L2 += items([f"v_sub_f32 v{XN+j}, v{XN+j}, v248" for j in range(40)])
            L2.insert(50, vitem(vm, "p1", G.poll_text(VPOLL, 251, SDBG)))
            L2.insert(0, item("v_mov_b32 v251, 0"))
            side[4]["post"] = L2
            side[5]["need"].add("p1")
            side[5]["code"] = lambda: G.poll_check(VPOLL, 251, SDBG, 80)
            side[4]["post"] += items([f"v_lshrrev_b32 v252, 5, v{VLANE}", f"v_lshl_add_u32 v252, v252, 30, v{VL16}"])
            Lm = [item(f"s_mul_i32 s48, s{S_W}, 2560")]
            for p in range(4):
                for rnd in range(3):
                    r = MA[3 * p + rnd]
                    Lm.append(vitem(vm, "M", f"buffer_load_dwordx4 v[{r}:{r+3}], v{VL16 if rnd < 2 else 252}, s[20:23], s48 offen offset:{1024*rnd} sc1"))
                if p < 3:
                    Lm.append(item("s_add_u32 s48, s48, 15360"))
            side[5]["pre"] = Lm
            L3 = [f"v_mul_f32 v249, v{XN}, v{XN}"] + [f"v_fmac_f32 v249, v{XN+j}, v{XN+j}" for j in range(1, 40)]
            side[5]["post"] = items(L3[:30])
            side[6]["need"].add("M")
            F = glue(items([f"s_cmp_eq_u32 s{S_W}, 1", "s_cselect_b32 s48, 1.0, 0"]))
            F += items([f"s_mov_b32 s49, {hex(f32bits(QSCALE))}", f"s_mul_i32 s60, s{S_W}, 3072",
                        f"s_add_u32 s60, s60, {SPARE}", f"v_add_u32 v251, s60, v{VL16}"])
            for rnd in range(3):
                b = MA[rnd]
                T = []
                for t in range(4):
                    T += [f"v_add_f32 v{b+t}, v{b+t}, v{MA[3+rnd]+t}", f"v_add_f32 v{MA[6+rnd]+t}, v{MA[6+rnd]+t}, v{MA[9+rnd]+t}",
                          f"v_add_f32 v{b+t}, v{b+t}, v{MA[6+rnd]+t}"]
                T += round_pair(b, b + 1, 250) + round_pair(b + 2, b + 3, 250)
                T += [f"v_add_f32 v{b+t}, s48, v{b+t}" for t in range(4)]
                T += round_pair(b, b + 1, 250) + round_pair(b + 2, b + 3, 250)
                T += [f"v_mul_f32 v{b+t}, s49, v{b+t}" for t in range(4)]
                T += [f"ds_write_b128 v251, v[{b}:{b+3}] offset:{1024*rnd}"]
                F += items(T)
            side[6]["post"] = F

            def ab_reads(ns):
                o = []
                for k, n in enumerate(ns):
                    for q, off in enumerate((512 * n, 512 * n + 16, 3072 + 512 * n, 3072 + 512 * n + 16)):
                        r = MA[4 * k + q]
                        o.append(item(f"ds_read_b128 v[{r}:{r+3}], v253 offset:{off}", mem=1))
                return o

            def h_calc(ns):
                o = []
                for k, n in enumerate(ns):
                    for t in range(8):
                        sh = MA[4 * k + (t >> 2)] + (t & 3)
                        sc = MA[4 * k + 2 + (t >> 2)] + (t & 3)
                        o.append(item(f"v_fmac_f32 v{sh}, v{XN+8*n+t}, v{sc}"))
                    for t in range(4):
                        sh = MA[4 * k + (t >> 1)] + 2 * (t & 1)
                        o.append(item(f"v_cvt_pk_bf16_f32 v{XN+8*n+t}, v{sh}, v{sh+1}"))
                    o.append(vitem(vm, "Hs", f"buffer_store_dwordx4 v[{XN+8*n}:{XN+8*n+3}], v{VL16}, s[24:27], "
                                             f"s{78 if n < 4 else 79} offen offset:{1024*(n % 4)} sc1"))
                return o
            L7 = ab_reads([0, 1, 2]) + items(L3[30:]) + rowred(249)
            L7 += items([f"v_mov_b32 v250, {hex(f32bits(1e-5))}", f"v_fmac_f32 v250, {hex(f32bits(1/640))}, v249"])
            L7 += [item(["v_rsq_f32 v250, v250", "s_nop 0"], 2)]
            L7 += items([f"v_mul_f32 v{XN+j}, v250, v{XN+j}" for j in range(24)])
            side[7]["post"] = L7
            L8 = glue(srd_items(srd_ws, 24, SWS, "hf")) + items(["s_add_u32 s79, s78, 4096"])
            L8 += h_calc([0, 1, 2]) + ab_reads([3, 4])
            L8 += items([f"v_mul_f32 v{XN+j}, v250, v{XN+j}" for j in range(24, 40)])
            side[8]["post"] = L8
            side[9]["pre"] = h_calc([3, 4])
            L10 = items([f"s_lshl_b32 s48, s{S_I}, 8", f"s_add_u32 s48, s48, {FL + 256*F_S2}", "v_mov_b32 v251, s48"])
            L10 += [item(lambda: [vm.wait({"Hs"})] + G.arrive_text(251, VONE, SWS), 2, e=30)]
            side[10]["post"] = L10
        else:
            RD, RA, RE, RO, RV = 128, 160, 161, 162, 163
            a(f"s_lshl_b32 s38, s2, 1")
            a(f"s_and_b32 s6, s{S_W}, 1")
            a("s_add_u32 s38, s38, s6")
            a(f"s_add_u32 s39, s{SLB}, {SPARE}")
            a(f"v_lshrrev_b32 v165, 2, v{VLANE}")
            a("v_and_b32 v166, 7, v165")
            a(f"v_lshlrev_b32 v{RA}, 8, v165")
            a(f"v_lshl_add_u32 v{RA}, v166, 5, v{RA}")
            a(f"v_add_u32 v{RA}, v142, v{RA}")
            a(f"v_add_u32 v{RA}, s39, v{RA}")
            a(f"v_mov_b32 v{RE}, v133")
            a(f"v_xor_b32 v{RO}, 128, v133")
            a("v_mov_b32 v166, v129")

            def rp_setup(rnd):
                if rnd == 0:
                    S = ["s_mov_b32 s48, s38"]
                    L = srd_items(srd_in, 16, P("wo"), SZ["wo"])
                    D = srd_items(srd_ws, 24, SWS, "wof")
                    S += ["s_mov_b32 s60, 128"]
                    rs, div, sh, nn = 1280, 52429, 18, 5
                elif rnd == 1:
                    S = ["s_add_u32 s48, s38, 512", "s_sub_u32 s49, s38, 128", "s_cmp_lt_u32 s38, 128",
                         "s_cselect_b32 s48, s48, s49", "s_cselect_b32 s60, 128, 54",
                         f"s_cselect_b32 s16, s{P('wo')}, s{P('w2')}", f"s_cselect_b32 s17, s{P('wo')+1}, s{P('w2')+1}",
                         f"s_mov_b32 s18, {SZ['w2']}", f"s_mov_b32 s61, {WS['w2f'][0]}", "s_cmp_lt_u32 s38, 128",
                         f"s_cselect_b32 s18, {SZ['wo']}, s18", f"s_cselect_b32 s61, {WS['wof'][0]}, s61",
                         "s_and_b32 s17, s17, 0xffff", "s_cmp_lt_u32 s38, 398", "s_cselect_b32 s18, s18, 0"]
                    L = []
                    D = items([f"s_add_u32 s24, s{SWS}, s61", f"s_addc_u32 s25, s{SWS+1}, 0", "s_and_b32 s25, s25, 0xffff",
                               "s_mov_b32 s26, s18"])
                    rs, div, sh, nn = 1280, 52429, 18, 5
                else:
                    S = ["s_mov_b32 s48, s38", "s_mov_b32 s60, 20"]
                    L = srd_items(srd_in, 16, P("w1"), SZ["w1"]) + items(["s_cmp_lt_u32 s38, 280", "s_cselect_b32 s18, s18, 0"])
                    D = srd_items(srd_ws, 24, SWS, "w1f") + items(["s_cmp_lt_u32 s38, 280", "s_cselect_b32 s26, s26, 0"])
                    rs, div, sh, nn = 3456, 4682, 16, 14
                S += [f"s_mul_i32 s42, s48, {div}", f"s_lshr_b32 s42, s42, {sh}", f"s_mul_i32 s43, s42, {nn}",
                      "s_sub_u32 s43, s48, s43", f"s_mul_i32 s44, s42, {32*rs}", "s_lshl_b32 s49, s43, 8",
                      "s_add_u32 s44, s44, s49",
                      f"v_mul_u32_u24 v{RV}, {rs}, v166", f"v_add_u32 v{RV+1}, v{RV}, v{RO}", f"v_add_u32 v{RV}, v{RV}, v{RE}"]
                D2 = ["s_mul_i32 s100, s43, s60", "s_lshl_b32 s100, s100, 3", "s_add_u32 s100, s100, s42",
                      "s_lshl_b32 s100, s100, 10", "s_lshl_b32 s101, s60, 10"]
                return glue(L + items(S)), glue(D + items(D2)), rs

            def rp_dma(rnd, rs):
                L = []
                for n in range(8):
                    m = item(f"s_add_u32 m0, s39, {1024*n}")
                    L += [m, vitem(vm, ("R", rnd), f"buffer_load_dwordx4 v{RV + (n & 1)}, s[16:19], s44 offen lds", after=m, dist=1),
                          item(f"s_add_u32 s44, s44, {4*rs}")]
                return L

            def rp_reads():
                L = []
                for j in range(8):
                    L += [item(f"v_xor_b32 v165, {32*j}, v{RA}"),
                          item(f"ds_read_b64_tr_b16 v[{RD+4*j}:{RD+4*j+1}], v165"),
                          item(f"ds_read_b64_tr_b16 v[{RD+4*j+2}:{RD+4*j+3}], v165 offset:4096")]
                return L

            def rp_stores():
                L = []
                for j in range(8):
                    L += [vitem(vm, "Rs", f"buffer_store_dwordx4 v[{RD+4*j}:{RD+4*j+3}], v{VL16}, s[24:27], s100 offen sc1"),
                          item("s_add_u32 s100, s100, s101")]
                return L
            for rnd in range(3):
                su, de, rs = rp_setup(rnd)
                k0 = 4 * rnd
                side[k0]["post"] += su
                side[k0 + 2]["post"] += rp_dma(rnd, rs) + de
                side[k0 + 4]["need"].add(("R", rnd))
                side[k0 + 4]["post"] = rp_reads() + side[k0 + 4]["post"]
                side[k0 + 5]["post"] += rp_stores()
            FD = 168
            side[10]["post"] += [item("v_mov_b32 v251, 128"), vitem(vm, "p1", G.poll_text(VPOLL, 251, SDBG))]
            side[11]["need"].add("p1")

            def fin_check():
                a("s_cmp_ge_u32 s38, 10")
                a("s_cbranch_scc1 Lfinskip")
                G.poll_check(VPOLL, 251, SDBG, 160)
                G.label("Lfinskip")
            side[11]["code"] = fin_check
            S = glue(items(["s_cmp_lt_u32 s38, 10", "s_cselect_b32 s22, s22, 0", "s_lshl_b32 s48, s38, 10",
                            "s_add_u32 s48, s48, 5120", "s_mov_b32 s49, s48"]))
            for p in range(4):
                S.append(vitem(vm, "Fm", f"buffer_load_dwordx4 v[{FD+4*p}:{FD+4*p+3}], v{VL16}, s[20:23], s49 offen sc1"))
                S.append(item("s_add_u32 s49, s49, 15360"))
            side[11]["post"] += S
            side[13]["need"].add("Fm")
            T = []
            for t in range(4):
                T += [f"v_add_f32 v{FD+t}, v{FD+t}, v{FD+4+t}", f"v_add_f32 v{FD+8+t}, v{FD+8+t}, v{FD+12+t}",
                      f"v_add_f32 v{FD+t}, v{FD+t}, v{FD+8+t}"]
            T += round_pair(FD, FD + 1, 165) + round_pair(FD + 2, FD + 3, 165)
            T += ["s_lshl_b32 s49, s38, 6", "s_sub_u32 s49, s49, 160", f"v_add_u32 v184, s49, v{VLANE}",
                  "v_subrev_u32 v185, 160, v184", "v_cmp_gt_u32 vcc, 160, v185"]
            T2 = items(T) + [item(["s_nop 1", "v_cndmask_b32 v186, 0, 1.0, vcc"], 2),
                             item("v_cndmask_b32 v185, v184, v185, vcc"),
                             item("v_mov_b32 v187, 1280"), item("v_cndmask_b32 v187, v187, 0, vcc")]
            T = [f"v_add_f32 v{FD+t}, v186, v{FD+t}" for t in range(4)]
            T += [f"v_cvt_pk_bf16_f32 v188, v{FD}, v{FD+1}", f"v_cvt_pk_bf16_f32 v189, v{FD+2}, v{FD+3}",
                  f"v_lshlrev_b32 v{FD}, 16, v188", f"v_and_b32 v{FD+1}, 0xffff0000, v188",
                  f"v_lshlrev_b32 v{FD+2}, 16, v189", f"v_and_b32 v{FD+3}, 0xffff0000, v189",
                  "v_lshrrev_b32 v190, 3, v185", "v_lshl_add_u32 v187, v190, 6, v187",
                  "v_and_b32 v190, 3, v185", "v_lshl_add_u32 v187, v190, 4, v187",
                  "v_and_b32 v190, 4, v185", "v_lshl_add_u32 v187, v190, 1, v187",
                  "v_add_u32 v187, 15360, v187", "v_mov_b32 v190, 320", "v_cmp_gt_u32 vcc, v190, v184"]
            T2 += items(T) + [item(["s_nop 1", "v_cndmask_b32 v187, -1, v187, vcc"], 2)]
            T2 += glue(srd_items(srd_ws, 20, SWS, "modf", 17920) + items(["s_cmp_lt_u32 s38, 10", "s_cselect_b32 s22, s22, 0"]))
            T2 += [vitem(vm, "Fs", f"buffer_store_dwordx4 v[{FD}:{FD+3}], v{VL16}, s[20:23], s48 offen sc1"),
                   vitem(vm, "Fs", "buffer_store_dwordx2 v[188:189], v187, s[20:23], 0 offen sc1")]
            side[14]["post"] += T2
        side[1]["need"].add("P")
        if not isV:
            def s1_arrive():
                a(f"s_lshr_b32 s6, s72, 2")
                a(f"s_or_b32 s6, s6, s{S_W}")
                a("v_mov_b32 v251, s77")
                a("s_cmp_lg_u32 s6, 0")
                a("s_cbranch_scc1 Lnos1")
                a(G.arrive_text(251, VONE, SDBG))
                G.label("Lnos1")
            side[1]["code"] = s1_arrive
        Q12 = qsetup_scalar()
        if isV:
            Q12 += items([f"s_lshl_b32 s61, s{S_I}, 8", f"s_add_u32 s61, s61, {FL + 256*F_S2}", "v_mov_b32 v251, s61"])
        Q12 += [vitem(vm, "p2", G.poll_text(VPOLL, 251, SWS))]
        Q12 += items([f"s_and_b32 s61, s{S_W}, 1", "s_lshl_b32 s61, s61, 7", f"v_xor_b32 v{VWD}, s61, v{VW}",
                      f"v_add_u32 v{VWD+1}, {32768-1024}, v{VWD}",
                      f"v_and_b32 v{VH}, 3, v{VLANE}", f"v_lshlrev_b32 v{VH}, 4, v{VH}",
                      f"v_lshrrev_b32 v{VW+3}, 4, v{VLANE}", f"v_lshl_add_u32 v{VH}, v{VW+3}, 6, v{VH}",
                      f"v_bfe_u32 v{VW+3}, v{VLANE}, 2, 2", f"v_mul_u32_u24 v{VW+3}, 5120, v{VW+3}",
                      f"v_add_u32 v{VH}, v{VH}, v{VW+3}"])
        if OPT["prefetch"]:
            Q12 += items([f"v_min_u32 v{VW+3}, 39, v{VLANE}", f"v_lshrrev_b32 v254, 1, v{VW+3}", "v_lshlrev_b32 v254, 13, v254",
                          f"v_and_b32 v{VW+3}, 1, v{VW+3}", f"v_lshl_add_u32 v254, v{VW+3}, 7, v254",
                          f"s_lshl_b32 s61, s{S_I}, 2", f"s_add_u32 s61, s61, s{S_W}", f"s_mul_i32 s61, s61, {20*8192}",
                          f"s_lshl_b32 s7, s{S_H}, 8", "s_add_u32 s61, s61, s7"])
            Q12 += [vitem(vm, "pf", f"buffer_load_dword v{VW+3}, v254, s[{SRD_WQ}:{SRD_WQ+3}], s61 offen")]
        side[12]["post"] += Q12
        side[13]["need"].add("p2")
        side[13]["code"] = lambda: G.poll_check(VPOLL, 251, SWS, 64)
        side[13]["post"] = w_dma(vm, 0) + h_load(vm, 0) + w_dma(vm, 1) + side[13]["post"]
        Q14 = items([f"s_lshr_b32 s7, s{S_W}, 1", "s_lshl_b32 s7, s7, 14", f"s_sub_u32 s7, {98304 - 32768}, s7"])
        Q14 += items([f"v_add_u32 v{VQR[db]}, s7, v{VWA[db]}" for db in range(8)])
        side[14]["post"] = h_load(vm, 1) + w_dma(vm, 2) + w_dma(vm, 3) + Q14 + side[14]["post"]
        side[15]["need"].add(("W", 0))
        side[15]["post"] = h_load(vm, 2) + w_dma(vm, 4) + h_load(vm, 3) + w_dma(vm, 5)

        a(vm.wait({("T", 0)}))
        a("s_barrier")
        G.stamp(1)
        for n, s in enumerate(kv_reads(0, isV)):
            a(s)
            if n == 11:
                a("s_waitcnt lgkmcnt(4)")
        for ks in range(16):
            t = ks >> 1
            base = ST + 64 * (ks & 1)
            mf = []
            for x in range(8):
                for y in range(8):
                    f, b = acc_kv(x, y)
                    c = "0" if ks == 0 else R(f, b, 4)
                    mf.append([f"{MF} {R(f, b, 4)}, a[{base+4*x}:{base+4*x+3}], a[{base+32+4*y}:{base+32+4*y+3}], {c}", []])
            sd = side[ks]
            need = set(sd["need"])
            if ks & 1:
                need.add(("T", t + 1))
            a(vm.wait(need, lgkm=0))
            first = mf.pop(0)
            a(first[0])
            if ks & 1:
                a("s_barrier")
            if sd["code"]:
                sd["code"]()
            rd = items(kv_reads(ks + 1, isV) if ks < 15 else wq_reads(0), mem=1)
            spread(rd, 0, 44)
            dm = dma_tile(vm, t + 2) if (ks & 1 and t + 2 < 8) else []
            rest = sd["pre"] + dm + sd["post"]
            for it in rest:
                it.setdefault("e", 0)
                it["t"] = -1 if (it in dm or it in sd["pre"]) else 0
            if not dm and not sd["pre"]:
                es = [it["e"] for it in rest]
                spread(rest, 0, 58)
                for it, e in zip(rest, es):
                    it["e"] = e
            over = schedule(a, mf, [rd, rest])
            if over:
                print(f"  kv {'V' if isV else 'K'} step {ks}: overflow {over}")
        endq.append(list(vm.q))
        if not isV:
            a("s_branch LphB")
        allpaths.append(G.paths[0])
    G.paths = allpaths
    G.label("LphB")
    G.stamp(2)
    q0 = [t for t in endq[0] if isinstance(t, tuple) and t[0] in ("W", "H")]
    q1 = [t for t in endq[1] if isinstance(t, tuple) and t[0] in ("W", "H")]
    assert q0 == q1, (q0, q1)
    vm = VmTrack(["old"] + q0)
    flat(a, h_load(vm, 4))
    PK = 128
    a("s_nop 2")
    for p in range(2):
        for y in range(8):
            d = PK + 4 * (8 * p + y)
            for h2 in range(2):
                f, b = acc_kv(2 * p + h2, y)
                a(f"v_cvt_pk_bf16_f32 v{d+2*h2}, v{b}, v{b+1}")
                a(f"v_cvt_pk_bf16_f32 v{d+2*h2+1}, v{b+2}, v{b+3}")
    a(f"s_lshl_b32 s60, s{SSP}, 1")
    a(f"s_add_u32 s60, s60, s{SOUT}")
    a(f"s_mul_i32 s61, s{SSY}, 7")
    a(f"s_sub_u32 s{SSP}, s{SSP}, s61")
    TM, TD = VC, VCR
    stores = []
    for k in range(16):
        p, y = k >> 3, k & 7
        st = SSY if y < 7 else SSP
        d = PK + 4 * k
        A = [vitem(vm, "S", f"buffer_store_dwordx4 v[{d}:{d+3}], v{VL16}, s[28:31], s{SOUT} offen sc1"),
             item(f"s_add_u32 s{SOUT}, s{SOUT}, s{st}")]
        d = (200, 212)[k & 1]
        B = []
        for h2 in range(2):
            f, b = acc_kv(2 * (p + 2) + h2, y)
            B += items([f"v_accvgpr_read_b32 v{TM+t}, a{b+t}" for t in range(4)])
            B += items([f"v_cvt_pk_bf16_f32 v{d+2*h2}, v{TM}, v{TM+1}", f"v_cvt_pk_bf16_f32 v{d+2*h2+1}, v{TM+2}, v{TM+3}"])
        B += [vitem(vm, "S", f"buffer_store_dwordx4 v[{d}:{d+3}], v{VL16}, s[28:31], s60 offen sc1"),
              item(f"s_add_u32 s60, s60, s{st}")]
        stores.append(A + B)
    NSS = OPT.get("nss", 14)
    VF3 = 221
    a(f"s_lshl_b32 s6, s{S_H}, 8")
    a(f"s_add_u32 s6, s6, {FL + 256*F_S3}")
    a(f"v_mov_b32 v{VF3}, s6")
    for ks in range(20):
        mf = []
        hf_, hb = HSLOT[ks % 6]
        for db in range(8):
            for g in range(4):
                d = 32 * g + 4 * db
                w = AWB[ks & 1] + 4 * db
                mf.append([f"{MF} {R('v', d, 4)}, a[{w}:{w+3}], {R(hf_, hb+4*g, 4)}, {'0' if ks == 0 else R('v', d, 4)}", []])
        need = {("H", ks)}
        if ks % 2 == 0:
            need |= {("W", ks + 1), ("W", ks + 2)}
        if ks == 18:
            need |= {"S", "old"}
        a(vm.wait(need, lgkm=0))
        a(mf.pop(0)[0])
        if ks % 2 == 0:
            a("s_barrier")
        if ks == 18:
            G.arrive_w0(VF3, VONE, SWS)
        rd = spread(items(wq_reads(ks + 1), mem=1), 0, 18) if ks < 19 else []
        ld = []
        if ks + 6 < 20:
            ld += w_dma(vm, ks + 6)
        if ks + 5 < 20:
            ld += h_load(vm, ks + 5)
        spread(ld, 0, 26)
        st = []
        for k in range((16 * ks) // NSS, min(16, (16 * (ks + 1)) // NSS)):
            st += stores[k]
        spread(st, 0, 28)
        over = schedule(a, mf, [rd, ld, st])
        if over:
            print(f"  qproj step {ks}: overflow {over}")
    G.stamp(3)
    a(G.poll_text(VT, VF3, SWS))
    a(f"s_lshl_b32 s6, s{S_H}, 19")
    a(f"s_add_u32 s7, s6, {WS['kf'][0]}")
    a(f"s_add_u32 s{SRD_K}, s{SWS}, s7")
    a(f"s_addc_u32 s{SRD_K+1}, s{SWS+1}, 0")
    a(f"s_and_b32 s{SRD_K+1}, s{SRD_K+1}, 0xffff")
    a(f"s_sub_u32 s7, 16, s{S_I}")
    a(f"s_lshl_b32 s{SRD_K+2}, s7, 15")
    a(f"s_mov_b32 s{SRD_K+3}, 0x20000")
    a(f"s_add_u32 s7, s6, {WS['vf'][0] - 32768}")
    a(f"s_add_u32 s{SRD_V}, s{SWS}, s7")
    a(f"s_addc_u32 s{SRD_V+1}, s{SWS+1}, 0")
    a(f"s_and_b32 s{SRD_V+1}, s{SRD_V+1}, 0xffff")
    a(f"s_add_u32 s{SRD_V+2}, s{SRD_K+2}, 32768")
    a(f"s_mov_b32 s{SRD_V+3}, 0x20000")
    a(f"s_lshl_b32 s{S_OFF}, s{S_W}, 12")
    a(f"s_mov_b32 s{S_MASK}, 0xffff")
    for g in range(4):
        for db in range(8):
            d = 32 * g + 4 * db
            q = Q0 + 16 * g + 4 * (db >> 1) + 2 * (db & 1)
            a(f"v_cvt_pk_bf16_f32 v{q}, v{d}, v{d+1}")
            a(f"v_cvt_pk_bf16_f32 v{q+1}, v{d+2}, v{d+3}")
    a("s_waitcnt vmcnt(0)")
    G.poll_check(VT, VF3, SWS, 8)
    G.stamp(4)
    for d in range(4):
        flat(a, dma_items(k=True, v=(d >= 2)))
    a(f"v_mov_b32 v{VK}, v{VL16}")
    a(f"v_add_u32 v{VV}, {65536 + 3*16384}, v{VL16}")
    a(f"v_and_b32 v2, 15, v{VLANE}")
    a(f"s_lshl_b32 s6, s{S_W}, 4")
    a("v_add_u32 v2, s6, v2")
    a(f"v_lshrrev_b32 v3, 4, v{VLANE}")
    a("v_lshlrev_b32 v3, 2, v3")
    a("v_sub_u32 v2, v2, v3")
    a(f"v_mov_b32 v4, {hex(f32bits(-BIG))}")
    zi = list(range(AO, AO + 144))
    for kb in range(4):
        for t in range(4):
            a(f"v_cmp_gt_i32 vcc, {16*kb + t}, v2")
            a(f"v_accvgpr_write_b32 a{zi.pop()}, 0")
            a(f"v_accvgpr_write_b32 a{zi.pop()}, 0")
            a(f"v_cndmask_b32 v{BIAS + 4*kb + t}, 0, v4, vcc")
    for r in zi:
        a(f"v_accvgpr_write_b32 a{r}, 0")
    a(f"v_mov_b32 v{VT}, 0x3f803f80")
    for r in range(4):
        a(f"v_accvgpr_write_b32 a{AONE + r}, v{VT}")
    a(f"s_cmp_eq_u32 s{S_I}, 0")
    a(f"s_cselect_b32 s{S_Z}, 1.0, 0")
    a("s_waitcnt vmcnt(20)")
    a("s_barrier")
    for n, g2 in enumerate(kgroups(1, 0)):
        a(group_reads(g2, 4 * n)[1])
    G4, G3, G2 = [0, 1, 2, 3], [1, 2, 3], [2, 3]
    pos = iteration(a, 1, 0, qk=dict(typ=1, gs=G4, groups=kgroups(1, 0), mask=(0, 0, True), czero=True),
                    nxt=kgroups(1, 1), name="pro0")
    a("s_nop 7")
    for g in (1, 2, 3, 0):
        b0, b1, m = S0 + 4 * g, S0 + 16 + 4 * g, ET + g
        a(f"v_max3_f32 v{m}, v{b0}, v{b0+1}, v{b0+2}")
        a(f"v_max3_f32 v{m}, v{m}, v{b0+3}, v{b1}")
        a(f"v_max3_f32 v{m}, v{m}, v{b1+1}, v{b1+2}")
        a(f"v_max_f32 v{m}, v{m}, v{b1+3}")
    a(quad_red("v_max_f32", [ET, ET + 1, ET + 2, ET + 3], ET + 4))
    for g in range(4):
        for t in range(4):
            a(f"v_sub_f32 v{NEGM+4*g+t}, 0, v{ET+g}")
    for g in range(4):
        for kb in range(2):
            for t in range(4):
                r = S0 + 16 * kb + 4 * g + t
                a(f"v_sub_f32 v{r}, v{r}, v{ET+g}")
    pos = iteration(a, 0, pos, qk=dict(typ=1, gs=G4, groups=kgroups(1, 1), mask=(0, 2, True)),
                    sm=dict(typ=1, gs=G4), nxt=kgroups(1, 0, adv="exact"), bar=8, dma=dma_items(), name="pro1")
    assert pos == 0
    a(f"s_cmp_eq_u32 s{S_I}, 7")
    a(f"s_cselect_b32 s{S_Z}, 1.0, 0")
    a(f"s_lshl_b32 s{S_CNT}, s{S_I}, 1")
    a(f"s_sub_u32 s{S_CNT}, s{S_CNT}, 1")
    a(f"s_cmp_eq_u32 s{S_I}, 0")
    a("s_cbranch_scc1 LmaskB")

    def body1(qa, qb, sma, smb, pva, pvb, nxtb, name, extra=()):
        p = iteration(a, 1, 0, qk=dict(typ=1, groups=kgroups(1, 0), **qa), sm=dict(typ=1, gs=sma),
                      pv=dict(typ=1, gs=pva, groups=vgroups(1, 0, adv="exact")), nxt=kgroups(1, 1), name=name + "a",
                      extra=extra)
        p = iteration(a, 0, p, qk=dict(typ=1, groups=kgroups(1, 1), **qb), sm=dict(typ=1, gs=smb),
                      pv=dict(typ=1, gs=pvb, groups=vgroups(1, 1)), nxt=nxtb, bar=8, dma=dma_items(), name=name + "b")
        return p
    pA, pB = G.paths
    G.paths = [pA]
    a(".p2align 4")
    G.label("Lloop1")
    body1(dict(gs=G4), dict(gs=G4), G4, G4, G4, G4, kgroups(1, 0, adv="exact"), "loop1",
          extra=[item(f"s_sub_u32 s{S_CNT}, s{S_CNT}, 1")])
    a(f"s_cmp_lg_u32 s{S_CNT}, 0")
    a("s_cbranch_scc1 Lloop1")
    pA.append("Lloop1")
    G.label("LmaskA")
    body1(dict(gs=G4, mask=(0, 0, False)), dict(gs=G4, mask=(0, 2, False)), G4, G4, G4, G4,
          kgroups(1, 0, adv="exact"), "maskA")
    G.paths = [pA, pB]
    G.label("LmaskB")
    body1(dict(gs=G3, mask=(1, 0, False)), dict(gs=G3, mask=(1, 2, False)), G4, G3, G4, G4,
          kgroups(2, adv="exact")[:2], "maskB")
    U = 16384
    p = iteration(a, 1, 0, qk=dict(typ=2, gs=G2, groups=kgroups(2), mask=(2, 0, True)), sm=dict(typ=1, gs=G3),
                  pv=dict(typ=1, gs=G3, groups=vgroups(1, 0, up=U)), nxt=kgroups(2, up=U)[:2], name="trans",
                  extra=items([f"s_lshl_b32 s{S_CNT}, s{S_I}, 1", f"s_sub_u32 s{S_CNT}, 13, s{S_CNT}"]))
    assert p == 8
    a(f"s_cmp_eq_u32 s{S_I}, 7")
    a("s_cbranch_scc1 LX2")
    G.paths = [pA]
    G.label("LX1")
    p = iteration(a, 0, 8, qk=dict(typ=2, gs=G2, groups=kgroups(2, up=U)), sm=dict(typ=2, gs=G2),
                  pv=dict(typ=1, gs=G3, groups=vgroups(1, 1, up=U)), nxt=kgroups(2, adv="xor")[:2], bar=8,
                  dma=dma_items(), name="X1")
    assert p == 0
    a(".p2align 4")
    G.label("Lloop2")
    iteration(a, 1, 0, qk=dict(typ=2, gs=G2, groups=kgroups(2)), sm=dict(typ=2, gs=G2),
              pv=dict(typ=2, gs=G2, groups=vgroups(2, adv="xor")), nxt=kgroups(2, up=U)[:2], bar=8,
              dma=dma_items(), name="loop2a", extra=[item(f"s_sub_u32 s{S_CNT}, s{S_CNT}, 1")])
    iteration(a, 0, 0, qk=dict(typ=2, gs=G2, groups=kgroups(2, up=U)), sm=dict(typ=2, gs=G2),
              pv=dict(typ=2, gs=G2, groups=vgroups(2, up=U)), nxt=kgroups(2, adv="xor")[:2], bar=8,
              dma=dma_items(), name="loop2b")
    a(f"s_cmp_lg_u32 s{S_CNT}, 0")
    a("s_cbranch_scc1 Lloop2")
    pA.append("Lloop2")
    G.label("LtailA")
    iteration(a, 1, 0, qk=dict(typ=2, gs=G2, groups=kgroups(2), mask=(2, 0, False)), sm=dict(typ=2, gs=G2),
              pv=dict(typ=2, gs=G2, groups=vgroups(2, adv="xor")), nxt=kgroups(2, up=U)[:2], bar=8,
              dma=dma_items(k=False), name="tailA1")
    iteration(a, 0, 0, qk=dict(typ=2, gs=[3], groups=kgroups(2, up=U), mask=(3, 0, False)), sm=dict(typ=2, gs=G2),
              pv=dict(typ=2, gs=G2, groups=vgroups(2, up=U)), nxt=vgroups(2, adv="xor")[:2], bar=4, name="tailA2")
    a("s_branch LtailB")
    G.paths = [pB]
    G.label("LX2")
    p = iteration(a, 0, 8, qk=dict(typ=2, gs=[3], groups=kgroups(2, up=U), mask=(3, 0, False)), sm=dict(typ=2, gs=G2),
                  pv=dict(typ=1, gs=G3, groups=vgroups(1, 1, up=U)), nxt=vgroups(2, adv="xor")[:2], bar=8, name="X2")
    assert p == 0
    G.paths = [pA, pB]
    G.label("LtailB")
    VPA = 222
    ex = items([f"v_and_b32 v{VF3}, 31, v{VLANE}", f"v_lshlrev_b32 v{VF3}, 8, v{VF3}",
                f"v_add_u32 v{VF3}, {FL + 256*F_S3}, v{VF3}"]) + [item(G.poll_text(VPA, VF3, SWS), 2)]
    iteration(a, 1, 0, sm=dict(typ=2, gs=[3]), pv=dict(typ=2, gs=G2, groups=vgroups(2)),
              nxt=vgroups(2, up=U)[:2], bar=0, name="tailB1", extra=ex)
    a("s_nop 1")
    iteration(a, 0, 0, pv=dict(typ=2, gs=[3], groups=vgroups(2, up=U)), name="tailB2")
    G.stamp(5)
    a("s_barrier")
    SRD_O = 28
    srd_ws(a, SRD_O, SWS, "ctxf")
    a(f"s_mov_b32 s6, {hex(f32bits(2.0**64))}")
    a("s_nop 0")
    for g in range(4):
        a(f"v_accvgpr_read_b32 v{ET+g}, a{AL+4*g}")
    a(f"v_cmp_ngt_f32 vcc, s6, v{ET}")
    for g in range(1, 4):
        a(f"v_cmp_ngt_f32 s[48:49], s6, v{ET+g}")
        a("s_nop 0")
        a("s_or_b64 vcc, vcc, s[48:49]")
    a("s_cmp_lg_u64 vcc, 0")
    a("s_cbranch_scc1 Lslow")
    pB += ["Lslow", "Lslowl", "Lslowl"]
    G.label("Lepi")
    for g in range(4):
        a(f"v_accvgpr_read_b32 v{ET+2*g}, a{AL+4*g}")
    for g in range(4):
        a(f"v_rcp_f32 v{ET+2*g}, v{ET+2*g}")
        a(f"s_lshl_b32 s{SHO+g}, s{SBLK+g}, 17")
    a(f"s_lshl_b32 s6, s{S_H}, 12")
    vm = VmTrack(["pa"])
    n = 0
    for g in range(4):
        a(f"s_add_u32 s{SHO+g}, s{SHO+g}, s6")
        for sg in range(4):
            tb = 8 * (n % 4)
            d = 32 + 4 * (n % 4)
            for k in range(8):
                a(f"v_accvgpr_read_b32 v{tb+k}, a{AO + 32*g + 8*sg + k}")
            for k in range(4):
                a(f"v_pk_mul_f32 v[{tb+2*k}:{tb+2*k+1}], v[{tb+2*k}:{tb+2*k+1}], v[{ET+2*g}:{ET+2*g+1}] op_sel_hi:[1,0]")
            for k in range(4):
                a(f"v_cvt_pk_bf16_f32 v{d+k}, v{tb+2*k}, v{tb+2*k+1}")
            a(f"buffer_store_dwordx4 v[{d}:{d+3}], v{VL16}, s[{SRD_O}:{SRD_O+3}], s{SHO+g} offen offset:{1024*sg} sc1")
            vm.issue("C")
            n += 1
    G.stamp(6)
    import mega_tail
    mega_tail.tail(G, vm, VPA, VF3, VONE)
    G.paths = []
    G.label("Lslow")
    M = NEGM
    for r in range(AO, AO + 144):
        a(f"v_accvgpr_write_b32 a{r}, 0")
    a(f"v_and_b32 v{VT}, 15, v{VLANE}")
    for g in range(4):
        a(f"v_mov_b32 v{M+g}, {hex(f32bits(-BIG))}")
        a(f"s_lshl_b32 s6, s{SBLK+g}, 4")
        a(f"v_add_u32 v{M+4+g}, s6, v{VT}")
    a(f"v_lshrrev_b32 v{M+8}, 4, v{VLANE}")
    a(f"v_lshlrev_b32 v{M+8}, 2, v{M+8}")
    a(f"v_mov_b32 v{M+9}, {hex(f32bits(-BIG))}")
    a(f"s_mov_b32 s{S_OFF}, 0")
    G.label("Lslowl")
    for k in range(8):
        a(f"s_add_u32 s6, s{S_OFF}, {1024*k}")
        a(f"buffer_load_dwordx4 a[{ARING+4*k}:{ARING+4*k+3}], v{VL16}, s[{SRD_K}:{SRD_K+3}], s6 offen")
        a(f"s_add_u32 s6, s{S_OFF}, {32768 + 1024*k}")
        a(f"buffer_load_dwordx4 a[{ARING+32+4*k}:{ARING+32+4*k+3}], v{VL16}, s[{SRD_V}:{SRD_V+3}], s6 offen")
    a("s_waitcnt vmcnt(0)")
    for kb in range(2):
        for g in range(4):
            d = S0 + 16 * kb + 4 * g
            for sg in range(4):
                r = ARING + 16 * kb + 4 * sg
                q = Q0 + 16 * g + 4 * sg
                a(f"{MF} {R('v', d, 4)}, a[{r}:{r+3}], v[{q}:{q+3}], {'0' if sg == 0 else R('v', d, 4)}")
    a("s_nop 7")
    for g in range(4):
        a(f"v_sub_u32 v{VT}, v{M+4+g}, v{M+8}")
        for kb in range(2):
            for t in range(4):
                r = S0 + 16 * kb + 4 * g + t
                a(f"v_cmp_gt_i32 vcc, {16*kb + t}, v{VT}")
                a("s_nop 1")
                a(f"v_cndmask_b32 v{r}, v{r}, v{M+9}, vcc")
        b0, b1, m = S0 + 4 * g, S0 + 16 + 4 * g, ET + g
        a(f"v_max3_f32 v{m}, v{b0}, v{b0+1}, v{b0+2}")
        a(f"v_max3_f32 v{m}, v{m}, v{b0+3}, v{b1}")
        a(f"v_max3_f32 v{m}, v{m}, v{b1+1}, v{b1+2}")
        a(f"v_max3_f32 v{m}, v{m}, v{b1+3}, v{M+g}")
    a(quad_red("v_max_f32", [ET, ET + 1, ET + 2, ET + 3], ET + 4))
    for g in range(4):
        a(f"v_sub_f32 v{ET+4+g}, v{M+g}, v{ET+g}")
        a(f"v_mov_b32 v{M+g}, v{ET+g}")
        a(f"v_exp_f32 v{ET+4+g}, v{ET+4+g}")
    for g in range(4):
        regs = [AO + 32 * g + k for k in range(32)] + [AL + 4 * g + k for k in range(4)]
        for r in regs:
            a(f"v_accvgpr_read_b32 v{VT}, a{r}")
            a(f"v_mul_f32 v{VT}, v{ET+4+g}, v{VT}")
            a(f"v_accvgpr_write_b32 a{r}, v{VT}")
        for kb in range(2):
            for t in range(4):
                r = S0 + 16 * kb + 4 * g + t
                a(f"v_sub_f32 v{r}, v{r}, v{M+g}")
            for t in range(4):
                r = S0 + 16 * kb + 4 * g + t
                a(f"v_exp_f32 v{r}, v{r}")
            a("s_nop 0")
            r = S0 + 16 * kb + 4 * g
            a(f"v_cvt_pk_bf16_f32 v{P0+4*g+2*kb}, v{r}, v{r+1}")
            a(f"v_cvt_pk_bf16_f32 v{P0+4*g+2*kb+1}, v{r+2}, v{r+3}")
    a("s_nop 1")
    for db in range(8):
        r = ARING + 32 + 4 * db
        for g in range(4):
            o = AO + 32 * g + 4 * db
            a(f"{MF} {R('a', o, 4)}, a[{r}:{r+3}], {R('v', P0+4*g, 4)}, {R('a', o, 4)}")
    for g in range(4):
        a(f"{MF} {R('a', AL+4*g, 4)}, {R('a', AONE, 4)}, {R('v', P0+4*g, 4)}, {R('a', AL+4*g, 4)}")
    a(f"v_add_u32 v{M+8}, 32, v{M+8}")
    a(f"s_add_u32 s{S_OFF}, s{S_OFF}, 8192")
    a(f"s_cmp_lt_u32 s{S_OFF}, s{SRD_K+2}")
    a("s_nop 7")
    a("s_cbranch_scc1 Lslowl")
    a("s_branch Lepi")
    G.label("Lend")
    a("s_endpgm")
    kernel_desc(a, NAME, vgpr=512, accum=256)
    errs = []
    for p in (pA, pB):
        errs += a.check(p)
    return errs


if __name__ == "__main__":
    import sys
    out = sys.argv[1] if len(sys.argv) > 1 else "m.s"
    HEADER = open("adaLN_cond__compressed_kv_cla__dense_activation_squared_relu__prompt.s.ref").read().split("; Override launch")[0]
    G = Gen()
    errs = gen(G)
    for e in errs[:40]:
        print("CHECK:", e)
    txt = HEADER + "; @launch grid=(256,1,1) block=(256,1,1) lds=163840\n"
    txt += '.amdgcn_target "amdgcn-amd-amdhsa--gfx950"\n'
    txt += "\n".join(l.strip() if l.startswith("    ") else l for l in G.a.lines) + "\n"
    open(out, "w").write(txt)
    print("wrote", out, len(txt), "bytes", f"{len(errs)} ERRORS" if errs else "")
```

```python
from common import *
from sched import *

S0, P0, NEGM, CM, Q0, BIAS, ET = 0, 64, 96, 112, 128, 192, 208
VL16, VK, VV, VT, VLANE = 216, 217, 218, 219, 220
AO, AL, AONE, ARING = 0, 128, 144, 192
S_W, S_H, S_I = 3, 4, 5
S_OFF, S_MASK, S_Z, S_CNT = 68, 69, 70, 71
S_EV, S_EC, S_RET = 76, 77, 78
SRD_K, SRD_V = 8, 12
BIG = 1e30


def kgroups(typ, half=0, adv=None, up=0):
    if typ == 1:
        return [dict(v=VK, off=up + half * 8192 + kb * 4096, adv=(adv if kb == 0 else None)) for kb in range(2)]
    return [dict(v=VK, off=up + kb * 4096, adv=(adv if kb == 0 else None)) for kb in range(4)]


def vgroups(typ, half=0, adv=None, up=0):
    if typ == 1:
        return [dict(v=VV, off=up + half * 8192 + j * 4096, adv=(adv if j == 0 else None)) for j in range(2)]
    return [dict(v=VV, offs=[up + o for o in (2 * j * 1024, 8192 + 2 * j * 1024, (2 * j + 1) * 1024,
                                              8192 + (2 * j + 1) * 1024)],
                 adv=(adv if j == 0 else None)) for j in range(4)]


def group_reads(grp, slot):
    offs = grp.get("offs") or [grp["off"] + 1024 * k for k in range(4)]
    out = []
    for k, o in enumerate(offs):
        r = ARING + 4 * ((slot + k) % 16)
        out.append(f"ds_read_b128 a[{r}:{r+3}], v{grp['v']} offset:{o}")
    pre = []
    if grp["adv"] == "exact":
        if grp["v"] == VK:
            pre = [f"v_add_u32 v{VK}, 16384, v{VK}", f"v_and_b32 v{VK}, 0xffff, v{VK}"]
        else:
            pre = [f"v_add_u32 v{VT}, 16384, v{VV}", f"v_bfi_b32 v{VV}, s{S_MASK}, v{VT}, v{VV}"]
    elif grp["adv"] == "xor":
        pre = [f"v_xor_b32 v{grp['v']}, 0x8000, v{grp['v']}"]
    return pre, out


def dma_items(k=True, v=True):
    L = [item(f"s_and_b32 m0, s{S_OFF}, 0xffff")]
    if k:
        for n in range(4):
            L.append(item(f"buffer_load_dwordx4 v{VL16}, s[{SRD_K}:{SRD_K+3}], s{S_OFF} offen offset:{1024*n} lds", 2, mem=1))
    if v:
        L.append(item("s_xor_b32 m0, m0, 0x18000"))
        for n in range(4):
            L.append(item(f"buffer_load_dwordx4 v{VL16}, s[{SRD_V}:{SRD_V+3}], s{S_OFF} offen offset:{1024*n} lds", 2, mem=1))
    L.append(item(f"s_add_u32 s{S_OFF}, s{S_OFF}, 16384"))
    for n in range(1, len(L)):
        if "m0" in L[n - 1]["s"] and L[n].get("mem"):
            L[n]["after"] = L[n - 1]
            L[n]["dist"] = 1
    return L


def iteration(a, par, pos, qk=None, sm=None, pv=None, nxt=(), bar=None, dma=None, extra=(), name="", first_wait=False, hook=None, xs=()):
    mf, groups, gstart, cmitems = [], [], [], []
    if qk:
        sb = S0 + 32 * (par ^ 1)
        nkb = 2 if qk["typ"] == 1 else 4
        mask = qk.get("mask")
        gs = list(qk["gs"])
        if mask:
            gs = [g for g in gs if g != mask[0]] + [mask[0]]
        for kb in range(nkb):
            slot = pos + 4 * len(groups)
            groups.append(qk["groups"][kb])
            gstart.append(len(mf))
            for g in gs:
                blk = kb * 4 + g if qk["typ"] == 1 else kb * 2 + (g - 2)
                d = sb + 4 * blk
                for sg in range(4):
                    if sg:
                        c = R("v", d, 4)
                    elif mask and g == mask[0]:
                        kk = mask[1] + kb
                        c = R("v", CM + 4 * kk, 4)
                        for t in range(4):
                            dst, bi, ng = CM + 4 * kk + t, BIAS + 4 * kk + t, NEGM + 4 * g + t
                            if qk.get("czero"):
                                s = f"v_mul_f32 v{dst}, s{S_Z}, v{bi}"
                            elif mask[2]:
                                s = f"v_fma_f32 v{dst}, s{S_Z}, v{bi}, v{ng}"
                            else:
                                s = f"v_add_f32 v{dst}, v{bi}, v{ng}"
                            cmitems.append(item(s, need=len(mf)))
                    elif qk.get("czero"):
                        c = "0"
                    else:
                        c = R("v", NEGM + 4 * g, 4)
                    r = ARING + 4 * ((slot + sg) % 16)
                    q = Q0 + 16 * g + 4 * sg
                    mf.append([f"{MF} {R('v', d, 4)}, a[{r}:{r+3}], v[{q}:{q+3}], {c}", []])
    nqk = len(mf)
    if pv:
        pb = P0 + 16 * (par ^ 1)
        ones = []
        if pv["typ"] == 1:
            for g in pv["gs"]:
                ones.append(f"{MF} {R('a', AL+4*g, 4)}, {R('a', AONE, 4)}, {R('v', pb+4*g, 4)}, {R('a', AL+4*g, 4)}")
            for j in range(2):
                slot = pos + 4 * len(groups)
                groups.append(pv["groups"][j])
                gstart.append(len(mf))
                for k in range(4):
                    db = 4 * j + k
                    r = ARING + 4 * ((slot + k) % 16)
                    for g in pv["gs"]:
                        o = AO + 32 * g + 4 * db
                        mf.append([f"{MF} {R('a', o, 4)}, a[{r}:{r+3}], {R('v', pb+4*g, 4)}, {R('a', o, 4)}", []])
        else:
            for g in pv["gs"]:
                for tau in range(2):
                    f = (g - 2) * 2 + tau
                    ones.append(f"{MF} {R('a', AL+4*g, 4)}, {R('a', AONE, 4)}, {R('v', pb+4*f, 4)}, {R('a', AL+4*g, 4)}")
            for j in range(4):
                slot = pos + 4 * len(groups)
                groups.append(pv["groups"][j])
                gstart.append(len(mf))
                for k in range(2):
                    db = 2 * j + k
                    for g in pv["gs"]:
                        o = AO + 32 * g + 4 * db
                        for tau in range(2):
                            r = ARING + 4 * ((slot + 2 * k + tau) % 16)
                            f = (g - 2) * 2 + tau
                            mf.append([f"{MF} {R('a', o, 4)}, a[{r}:{r+3}], {R('v', pb+4*f, 4)}, {R('a', o, 4)}", []])
        for s in ones:
            mf.append([s, []])
    n = len(mf)
    ng = len(groups)
    allg = groups + list(nxt)
    rd = []
    gend = gstart[1:] + [n]
    barg = nqk if (qk and pv) else 0
    waits = []
    for k in range(ng):
        if k + 1 < len(allg):
            nout = 4 if k + 2 < len(allg) else 0
            if bar is not None and barg and gend[k] == barg:
                barwait = nout
            else:
                waits.append(item(f"s_waitcnt lgkmcnt({nout})", t=-2000, e=gend[k] - 1, d=gend[k] - 1))
        if k + 2 < len(allg):
            pre, rs = group_reads(allg[k + 2], pos + 4 * (k + 2))
            span = gend[k] - gstart[k]
            g0 = gstart[k]
            for p in pre:
                rd.append(item(p, t=gend[k] - 501, e=max(0, g0 - span // 2), d=gend[k] - 2))
            for j, s in enumerate(rs):
                rd.append(item(s, t=gend[k] - 501, e=(g0 if g0 == barg else max(0, g0 - 1)), d=gend[k] - 2, mem=1, rem=3 - j))
    if first_wait:
        mf[0][1].append(f"s_waitcnt lgkmcnt({4 if len(allg) > 1 else 0})")
    streams = [waits, rd]
    if bar is not None:
        if barg == 0:
            mf[0][1].insert(0, f"s_waitcnt vmcnt({bar}) lgkmcnt(0)")
            mf[0][1].insert(1, "s_barrier")
        else:
            streams.append([item([f"s_waitcnt vmcnt({bar}) lgkmcnt({barwait})", "s_barrier"], 2, t=-1000, e=barg - 1, d=barg - 1)])
    h0 = 0
    if hook:
        h0 = 1
        streams.append([item([f"s_add_u32 s{S_EV}, s{S_EV}, s{S_EV}", f"s_cbranch_scc1 {hook[0]}"], 1, lead=1, t=-900,
                             e=barg, d=barg, then=hook[1])])
    if dma:
        nd = sum(1 for it in dma if it["c"] == 2)
        step = min(6, (n - barg - 2 - h0) / nd)
        k = 0
        for it in dma:
            it["e"] = barg + h0 + 1 + int(k * step) if it["c"] == 2 else barg + h0
            it["t"] = it["e"] - 100
            k += it["c"] == 2
        streams.append(dma)
    lim = 8 if (qk and len(qk["gs"]) == 1) else 4
    early = [it for it in cmitems if it["need"] < lim]
    for it in early:
        a(it["s"])
    if early:
        a("s_nop 1")
    late = [it for it in cmitems if it["need"] >= lim]
    for it in late:
        it["e"] = max(0, it["need"] - 10)
        it["d"] = it["need"] - 2
        it["t"] = it["d"] - 500
    streams.append(late)
    if sm:
        sb = S0 + 32 * par
        pb = P0 + 16 * par
        ex, cv, frs = [], [], []
        if sm["typ"] == 1:
            for g in sm["gs"]:
                frs.append((g, [g, 4 + g]))
        else:
            for g in sm["gs"]:
                for tau in range(2):
                    frs.append(((g - 2) * 2 + tau, [(2 * tau) * 2 + g - 2, (2 * tau + 1) * 2 + g - 2]))
        k = 0
        for f, blks in frs:
            for hb, blk in enumerate(blks):
                for t in range(4):
                    it = item(f"v_exp_f32 v{ET + k % 8}, v{sb + 4*blk + t}", 2, t=-10)
                    if k >= 8:
                        it["after"] = cv[(k - 8) // 2]
                        it["dist"] = 0
                    ex.append(it)
                    if t & 1:
                        cv.append(item(f"v_cvt_pk_bf16_f32 v{pb + 4*f + 2*hb + t//2}, v{ET + (k-1) % 8}, v{ET + k % 8}",
                                       t=-20, after=it, dist=1))
                    k += 1
        streams += [cv, ex]
    ex2 = list(extra)
    if ex2:
        for it in ex2:
            it.setdefault("t", -5)
        streams.append(ex2)
    streams += list(xs)
    over = schedule(a, mf, streams)
    if over:
        print(f"  iteration {name}: overflow {over} slots (n={n})")
    return (pos + 4 * ng) % 16
```

```python
from asmlib import *

KA = dict(x=0, ckv=8, wq=16, wuk=24, wuv=32, wo=40, bx=48, w1=56, b1=64, w2=72, b2=80, c=88, wmod=96,
          out=104, dbg=112, ws=120)
SZ = dict(x=2621440, ckv=2097152, wq=5242880, wuk=4194304, wuv=4194304, wo=5242880, w1=2211840, b1=3456,
          w2=2211840, b2=1280, c=1280, wmod=4915200, out=2621440, dbg=256)
WS = dict(
    modp=(0x0000000, 4 * 3840 * 4),
    modf=(0x0010000, 3840 * 4),
    vecf=(0x0010000 + 15360, 2560),
    cst=(0x0018000, 1728 * 8),
    flags=(0x0040000, 160 * 256),
    stats=(0x0020000, 2048 * 8 * 8),
    hf=(0x0100000, 2621440),
    xmf=(0x0400000, 2621440),
    x1=(0x0700000, 2621440),
    wof=(0x0A00000, 5242880),
    w1f=(0x1000000, 2211840),
    w2f=(0x1300000, 2211840),
    uf=(0x1600000, 2048 * 1728 * 2),
    kf=(0x2000000, (1 << 24) + (1 << 20)),
    vf=(0x3200000, (1 << 24) + (1 << 20)),
    ctxf=(0x4400000, (1 << 24) + (1 << 20)),
    tim=(0x8000000, 1 << 20),
)
import os
OPT = dict(prefetch=1)
for kv in os.environ.get("OPT", "").split(","):
    if "=" in kv:
        k_, v_ = kv.split("=")
        OPT[k_] = int(v_)
HSTR = (1 << 19) + OPT.get("hpad", 1024)
CSTR = (1 << 17) + OPT.get("cpad", 0)
WSTR = (1 << 17) + OPT.get("wpad", 0)
WS["wof"] = (WS["wof"][0], 40 * WSTR)
APOL = [" sc1", ""][OPT.get("apol", 0)]
QSCALE = 1.4426950408889634 * 128 ** -0.5
MF = "v_mfma_f32_16x16x32_bf16"


def f32bits(x):
    import struct
    return struct.unpack("<I", struct.pack("<f", x))[0]


def srd_in(a, sreg, sptr, size):
    a(f"s_mov_b32 s{sreg}, s{sptr}")
    a(f"s_and_b32 s{sreg+1}, s{sptr+1}, 0xffff")
    a(f"s_mov_b32 s{sreg+2}, {size}")
    a(f"s_mov_b32 s{sreg+3}, 0x20000")


def srd_ws(a, sreg, sws, name, size=None):
    off, sz = WS[name]
    a(f"s_add_u32 s{sreg}, s{sws}, {off}")
    a(f"s_addc_u32 s{sreg+1}, s{sws+1}, 0")
    a(f"s_and_b32 s{sreg+1}, s{sreg+1}, 0xffff")
    a(f"s_mov_b32 s{sreg+2}, {sz if size is None else size}")
    a(f"s_mov_b32 s{sreg+3}, 0x20000")


def load_ptr(a, sreg, name):
    a(f"s_load_dwordx2 s[{sreg}:{sreg+1}], s[0:1], {KA[name]}")


import os
TIMING = bool(int(os.environ.get("TIMING", "0")))
_kidx = {}


def stamp(a, n):
    if TIMING:
        a(f"s_memrealtime s[{80+2*n}:{81+2*n}]")
        if n:
            a("s_waitcnt lgkmcnt(0)")


def endpgm(a, name, swave=16, vt=0, nst=1):
    if TIMING:
        k = _kidx.setdefault(name, len(_kidx))
        a("s_waitcnt vmcnt(0) lgkmcnt(0)")
        a("s_memrealtime s[94:95]")
        a("s_mov_b64 exec, -1")
        srd_ws(a, 96, 50, "tim")
        a("s_waitcnt lgkmcnt(0)")
        a(f"v_mov_b32 v{vt}, 0")
        for n in range(nst):
            a(f"v_writelane_b32 v{vt}, s{80+2*n}, {n}")
        a(f"v_writelane_b32 v{vt}, s94, 7")
        a(f"v_mbcnt_lo_u32_b32 v{vt+1}, -1, 0")
        a(f"v_mbcnt_hi_u32_b32 v{vt+1}, -1, v{vt+1}")
        a(f"v_cmp_gt_u32 vcc, 8, v{vt+1}")
        a(f"v_lshlrev_b32 v{vt+1}, 2, v{vt+1}")
        a(f"s_lshl_b32 s100, s2, 3")
        a(f"s_add_u32 s100, s100, s{swave}")
        a(f"s_lshl_b32 s100, s100, 5")
        a(f"s_add_u32 s100, s100, {k * 65536}")
        a("s_and_b64 exec, exec, vcc")
        a(f"buffer_store_dword v{vt}, v{vt+1}, s[96:99], s100 offen")
    a("s_endpgm")
```

```python
from common import *
from sched import *
from att2 import VL16, VLANE, S_W, S_H, S_I, ET, AO, AL
import mega
from mega import P, FL, F_S4, F_S5, F_S6, SWS, items, quad_red

SG, SJ, SRB, SCG = 58, 59, 60, 61
SK, SWK, SLB, SRM, SVO = 32, 33, 34, 35, 38
VA, VW5 = 224, 228
VQ, VR, VX, VVEC = 233, 234, 235, 236
VD = 237
VFL, VPL, VWL = 241, 242, 243
X1 = 244
VONE = 223
RA_, RW_ = 28, 24
NR, NL = 12, 8


def w_addrs(a, KS):
    a(f"s_mul_i32 s6, s{SCG}, {5*KS}")
    for c in range(5):
        a(f"v_add_u32 v{VW5+c}, s6, v{VL16}")
        if c < 4:
            a(f"s_add_u32 s6, s6, {KS}")


def a_addrs(a, KS):
    a(f"s_andn2_b32 s7, s{SRB}, 3")
    for r in range(4):
        a(f"s_add_u32 s6, s{S_W}, {r}")
        a("s_and_b32 s6, s6, 3")
        a("s_add_u32 s6, s6, s7")
        a(f"s_mul_i32 s6, s6, {KS}")
        a(f"v_add_u32 v{VA+r}, s6, v{VL16}")


def t1_setup(a):
    a(f"s_lshr_b32 s{SJ}, s2, 4")
    a(f"s_lshr_b32 s{SCG}, s{SJ}, 1")
    w_addrs(a, WSTR)
    srd_ws(a, RA_, SWS, "ctxf")
    srd_ws(a, RW_, SWS, "wof")
    a(f"s_lshl_b32 s{SK}, s{S_W}, 15")
    a(f"s_add_u32 s{SWK}, s{SK}, {NR*1024}")
    a(f"s_mul_i32 s{SLB}, s{S_W}, 40960")


def reduce_scatter(a):
    for r in range(1, 4):
        for c in range(5):
            d = 20 * r + 4 * c
            a(f"ds_write_b128 v{VD+r-1}, v[{d}:{d+3}] offset:{1024*c}")
    a("s_waitcnt lgkmcnt(0)")
    a("s_barrier")
    for r in range(1, 4):
        for c in range(5):
            d = 20 * r + 4 * c
            a(f"ds_read_b128 v[{d}:{d+3}], v{VD+3} offset:{(r-1)*5120 + 1024*c}")
    for r in range(1, 4):
        a(f"s_waitcnt lgkmcnt({5*(3-r)})")
        for k in range(0, 20, 2):
            a(f"v_pk_add_f32 v[{k}:{k+1}], v[{k}:{k+1}], v[{20*r+k}:{20*r+k+1}]")


class Feed:
    def __init__(self, a, vm, L):
        self.a, self.vm, self.L, self.prev = a, vm, list(L), None

    def go(self, n=10**9):
        while self.L and (n > 0 or self.L[0]["c"] != 2):
            it = self.L[0]
            if n <= 0 and "m0" in str(it["s"]):
                break
            self.L.pop(0)
            if it["c"] == 2:
                n -= 1
                if len(self.vm.q) >= 60:
                    self.a("s_waitcnt vmcnt(44)")
                    self.vm.q = self.vm.q[-44:]
            if self.prev is not None and it.get("after") is self.prev:
                self.a("s_nop 0")
            emit(self.a, it)
            self.prev = it


def tail(G, SBLK):
    a = G.a
    vm = VmTrack()
    pre = []
    for half in range(2):
        for c in range(5):
            m = item(f"s_add_u32 m0, s{SLB}, {8192*c + 4096*half}")
            pre.append(m)
            for k in range(4):
                it = vitem(vm, "W", f"buffer_load_dwordx4 v{VW5+c}, s[{RW_}:{RW_+3}], s{SWK} offen offset:{1024*k} lds")
                if k == 0:
                    it["after"], it["dist"] = m, 1
                pre.append(it)
        pre.append(item(f"s_add_u32 s{SWK}, s{SWK}, 4096" if half == 0 else f"s_mov_b32 s{SWK}, s{SK}"))

    def w_reg(s, slot):
        L = []
        for c in range(5):
            r = 20 * slot + 4 * c
            L.append(vitem(vm, ("W", s), f"buffer_load_dwordx4 a[{r}:{r+3}], v{VW5+c}, s[{RW_}:{RW_+3}], s{SWK} offen offset:{1024*(s % 4)}"))
        if s % 4 == 3:
            L.append(item(f"s_add_u32 s{SWK}, s{SWK}, {4096 if s != NR - 1 else 4096 + NL*1024}"))
        return L
    for s in range(NR):
        pre += w_reg(s, s)
    fd = Feed(a, vm, pre)
    fd.go(OPT.get("e0", 8))
    SHO = 42
    for g in range(4):
        a(f"v_accvgpr_read_b32 v{ET+2*g}, a{AL+4*g}")
    for g in range(4):
        a(f"v_rcp_f32 v{ET+2*g}, v{ET+2*g}")
        a(f"s_mul_i32 s{SHO+g}, s{SBLK+g}, {CSTR}")
    a(f"s_lshl_b32 s6, s{S_H}, 12")
    n = 0
    for g in range(4):
        a(f"s_add_u32 s{SHO+g}, s{SHO+g}, s6")
        for sg in range(4):
            tb = 8 * (n % 4)
            d = 32 + 4 * (n % 4)
            for k in range(8):
                a(f"v_accvgpr_read_b32 v{tb+k}, a{AO + 32*g + 8*sg + k}")
            for k in range(4):
                a(f"v_pk_mul_f32 v[{tb+2*k}:{tb+2*k+1}], v[{tb+2*k}:{tb+2*k+1}], v[{ET+2*g}:{ET+2*g+1}] op_sel_hi:[1,0]")
            for k in range(4):
                a(f"v_cvt_pk_bf16_f32 v{d+k}, v{tb+2*k}, v{tb+2*k+1}")
            a(f"buffer_store_dwordx4 v[{d}:{d+3}], v{VL16}, s[{RA_}:{RA_+3}], s{SHO+g} offen offset:{1024*sg} sc1")
            vm.issue("C")
            n += 1
            if n < 16:
                fd.go(OPT.get("e1", 1))
    G.stamp(6)
    fd.go(OPT.get("e2", 14))
    G.stamp("c2")
    a("s_and_b32 s6, s2, 7")
    a("s_lshl_b32 s6, s6, 1")
    a("s_bfe_u32 s7, s2, 0x10003")
    a(f"s_add_u32 s{SG}, s6, s7")
    a(f"s_and_b32 s6, s{SJ}, 1")
    a("s_lshl_b32 s6, s6, 2")
    a(f"s_lshl_b32 s{SRB}, s{SG}, 3")
    a(f"s_add_u32 s{SRB}, s{SRB}, s6")
    a(f"s_add_u32 s{SRB}, s{SRB}, s{S_W}")
    a_addrs(a, CSTR)
    a(f"v_lshrrev_b32 v{VQ}, 4, v{VLANE}")
    a(f"v_and_b32 v{VR}, 15, v{VLANE}")
    a(f"v_mul_u32_u24 v{VX}, 1280, v{VR}")
    a(f"v_lshl_add_u32 v{VX}, v{VQ}, 3, v{VX}")
    a(f"v_lshlrev_b32 v{VVEC}, 4, v{VQ}")
    for r in range(1, 4):
        a(f"s_add_u32 s6, s{S_W}, {r}")
        a("s_and_b32 s6, s6, 3")
        a("s_mul_i32 s6, s6, 15360")
        a(f"s_add_u32 s6, s6, {(r-1)*5120}")
        a(f"v_add_u32 v{VD+r-1}, s6, v{VL16}")
    a(f"s_mul_i32 s6, s{S_W}, 15360")
    a(f"v_add_u32 v{VD+3}, s6, v{VL16}")
    a(f"v_add_u32 v{VWL}, s{SLB}, v{VL16}")
    a(f"s_mul_i32 s{SRM}, s{SRB}, 20480")
    a(f"s_mul_i32 s6, s{SCG}, 160")
    a(f"s_add_u32 s{SRM}, s{SRM}, s6")
    a(f"s_mul_i32 s{SVO}, s{SCG}, 320")
    srd_in(a, 16, P("x"), SZ["x"])
    srd_ws(a, 20, SWS, "modf", 17920)
    a(f"s_lshl_b32 s6, s{S_I}, 2")
    a(f"s_lshr_b32 s7, s{S_H}, 3")
    a("s_add_u32 s6, s6, s7")
    a("s_lshl_b32 s6, s6, 8")
    a(f"s_add_u32 s6, s6, {FL + 256*F_S4}")
    a(f"v_mov_b32 v{VFL}, s6")
    a(vm.wait({"C"}))
    a("s_barrier")
    G.arrive_w0(VFL, VONE, SWS)
    G.stamp(7)
    a(f"s_sub_u32 s6, 15, s{SG}")
    a(f"s_min_u32 s6, s6, s{SG}")
    a("s_lshl_b32 s6, s6, 2")
    a(f"s_add_u32 s6, s6, s{S_W}")
    a("s_lshl_b32 s6, s6, 8")
    a(f"s_add_u32 s6, s6, {FL + 256*F_S4}")
    a(f"v_mov_b32 v{VFL}, s6")
    nleft = sum(1 for it in fd.L if it["c"] == 2)
    fd.go(nleft - OPT.get("e3", 12))
    a(G.poll_text(VPL, VFL, SWS))
    vm.issue("pl")
    fd.go()
    G.stamp("c3")
    a(vm.wait({"pl"}))
    G.stamp("c4")
    G.poll_check(VPL, VFL, SWS, 8)
    G.stamp(8)
    AR, NA, WS2 = 80, 4, 144

    def act(s):
        L = []
        for r in range(4):
            b = AR + 16 * (s % NA) + 4 * r
            L.append(vitem(vm, ("A", s), f"buffer_load_dwordx4 v[{b}:{b+3}], v{VA+r}, s[{RA_}:{RA_+3}], s{SK} offen offset:{1024*(s % 4)}{APOL}"))
        if s % 4 == 3:
            L.append(item(f"s_add_u32 s{SK}, s{SK}, 4096"))
        return L
    for s in range(NA - 1):
        flat(a, act(s))
    wq = []
    for s in range(NR + NL, 32):
        L = w_reg(s, s - NR - NL)
        for it in L:
            it["free"] = s - NR - NL + 1
        wq += L
    EX, EG, EC = 184, 144, 164
    epi = []
    a(f"s_add_u32 s42, s{SVO}, {2*2560}")
    a(f"s_add_u32 s43, s{SVO}, {4*2560}")
    for c in range(5):
        epi.append(vitem(vm, "E", f"buffer_load_dwordx2 v[{EX+2*c}:{EX+2*c+1}], v{VX}, s[16:19], s{SRM} offen offset:{32*c}"))
        epi.append(vitem(vm, "E", f"buffer_load_dwordx4 v[{EG+4*c}:{EG+4*c+3}], v{VVEC}, s[20:23], s42 offen offset:{64*c} sc1"))
        epi.append(vitem(vm, "E", f"buffer_load_dwordx4 v[{EC+4*c}:{EC+4*c+3}], v{VVEC}, s[20:23], s43 offen offset:{64*c} sc1"))
    VW1, SW1, RW1 = 194, 39, 8
    t = Asm()
    srd_ws(t, RW1, SWS, "w1f")
    su3 = [l.strip() for l in t.lines]
    su3 = [item(su3[:2], 2)] + items(su3[2:])
    su3 += items([f"s_lshl_b32 s6, s{SJ}, 3", f"s_lshl_b32 s7, s{S_W}, 1", "s_add_u32 s49, s6, s7", "s_mul_i32 s6, s49, 20480",
                  f"v_add_u32 v{VW1}, s6, v{VL16}", f"v_add_u32 v{VW1+1}, 20480, v{VW1}", f"s_mov_b32 s{SW1}, 0",
                  f"s_lshl_b32 s44, s{S_W}, 12", "s_add_u32 s44, s44, 147456", "s_mov_b32 s45, 15360"])
    m = item("s_mov_b32 m0, s44")
    vecl = [m] + [vitem(vm, "V", f"buffer_load_dwordx4 v{VL16}, s[20:23], s45 offen offset:{1024*k} sc1 lds") for k in range(3)]
    vecl[1]["after"], vecl[1]["dist"] = m, 1
    nw = sum(1 for it in wq if it["c"] == 2)
    done = 0
    for s in range(32):
        def wreg(c):
            if s < NR:
                return R("a", 20 * s + 4 * c, 4)
            if s < NR + NL:
                return R("v", WS2 + 20 * (s & 1) + 4 * c, 4)
            return R("a", 20 * (s - NR - NL) + 4 * c, 4)
        mf = []
        for c in range(5):
            for r in range(4):
                d = 20 * r + 4 * c
                b = AR + 16 * (s % NA) + 4 * r
                mf.append([f"{MF} {R('v', d, 4)}, {wreg(c)}, v[{b}:{b+3}], {'0' if s == 0 else R('v', d, 4)}", []])
        inl = NR <= s < NR + NL
        a(vm.wait({("A", s), ("W", s)}, lgkm=(0 if inl else None)))
        G.stamp(f"t{s}")
        if s == 24:
            a("s_barrier")
        ld = act(s + NA - 1) if s + NA - 1 < 32 else []
        tgt = min(nw, ((s + 0) * nw) // 26) if s >= 1 else 0
        while wq and (done < tgt or wq[0]["c"] == 1) and wq[0]["free"] <= s:
            it = wq.pop(0)
            done += it["c"] == 2
            ld.append(it)
        if s == 27:
            ld += su3
        if s >= 28:
            k = 4 if s == 28 else 8
            ld += epi[:k]
            epi = epi[k:]
        if s == 30:
            ld += vecl
        spread(ld, 0, 19)
        rd = []
        if NR <= s + 1 < NR + NL:
            k = s + 1 - NR
            rd = spread(items([f"ds_read_b128 v[{WS2+20*((s+1)&1)+4*c}:{WS2+20*((s+1)&1)+4*c+3}], v{VWL} offset:{8192*c + 1024*k}"
                               for c in range(5)], mem=1), 0, 8)
        if s == 31:
            w1 = []
            for ks in range(20):
                for n in range(2):
                    r = 8 * ks + 4 * n
                    w1.append(vitem(vm, "W1", f"buffer_load_dwordx4 a[{r}:{r+3}], v{VW1+n}, s[{RW1}:{RW1+3}], s{SW1} offen offset:{1024*(ks % 4)}"))
                if ks % 4 == 3:
                    w1.append(item(f"s_add_u32 s{SW1}, s{SW1}, 4096"))
            ld = spread(w1[:9], 0, 19)
            w1 = w1[9:]
        schedule(a, mf, [rd, ld])
    assert not wq and not epi
    G.stamp(9)
    fd = Feed(a, vm, w1)
    fd.go(OPT.get("w1a", 8))
    G.stamp("d1")
    reduce_scatter(a)
    G.stamp("d2")
    fd.go(OPT.get("w1b", 8))
    a(vm.wait({"E"}))
    X = 20
    for j in range(10):
        a(f"v_lshlrev_b32 v{X+2*j}, 16, v{EX+j}")
        a(f"v_and_b32 v{X+2*j+1}, 0xffff0000, v{EX+j}")
    for k in range(0, 20, 2):
        a(f"v_pk_fma_f32 v[{X+k}:{X+k+1}], v[{EG+k}:{EG+k+1}], v[{k}:{k+1}], v[{X+k}:{X+k+1}]")
    for j in range(10):
        a(f"v_cvt_pk_bf16_f32 v{X1+j}, v{X+2*j}, v{X+2*j+1}")
    for j in range(10):
        a(f"v_lshlrev_b32 v{X+2*j}, 16, v{X1+j}")
        a(f"v_and_b32 v{X+2*j+1}, 0xffff0000, v{X1+j}")
    for k in range(0, 20, 2):
        a(f"v_pk_mul_f32 v[{k}:{k+1}], v[{X+k}:{X+k+1}], v[{EC+k}:{EC+k+1}]")
    XM = 52
    for j in range(10):
        a(f"v_cvt_pk_bf16_f32 v{XM+j}, v{2*j}, v{2*j+1}")
    srd_ws(a, RA_, SWS, "xmf")
    a(f"s_mul_i32 s6, s{SCG}, 5")
    a("s_lshr_b32 s6, s6, 1")
    a("s_lshl_b32 s6, s6, 10")
    a(f"s_mul_i32 s7, s{SRB}, 20480")
    a("s_add_u32 s6, s6, s7")
    a(f"s_bitcmp1_b32 s{SCG}, 0")
    a("s_cbranch_scc1 Lxmodd")
    sr = f"s[{RA_}:{RA_+3}]"
    a(f"buffer_store_dwordx4 v[{XM}:{XM+3}], v{VL16}, {sr}, s6 offen sc1")
    a(f"buffer_store_dwordx4 v[{XM+4}:{XM+7}], v{VL16}, {sr}, s6 offen offset:1024 sc1")
    a(f"buffer_store_dwordx2 v[{XM+8}:{XM+9}], v{VL16}, {sr}, s6 offen offset:2048 sc1")
    a("s_branch Lxmdone")
    G.label("Lxmodd", rec=False)
    a(f"buffer_store_dwordx2 v[{XM}:{XM+1}], v{VL16}, {sr}, s6 offen offset:8 sc1")
    a(f"buffer_store_dwordx4 v[{XM+2}:{XM+5}], v{VL16}, {sr}, s6 offen offset:1024 sc1")
    a(f"buffer_store_dwordx4 v[{XM+6}:{XM+9}], v{VL16}, {sr}, s6 offen offset:2048 sc1")
    G.label("Lxmdone")
    for _ in range(3):
        vm.issue("X")
    for k in range(2, 20, 2):
        a(f"v_pk_add_f32 v[64:65], v[{X if k == 2 else 64}:{X+1 if k == 2 else 65}], v[{X+k}:{X+k+1}]")
    a("v_add_f32 v64, v64, v65")
    a(quad_red("v_add_f32", [64], 66))
    a(f"v_mul_f32 v64, {hex(f32bits(1/80))}, v64")
    for k in range(0, 20, 2):
        a(f"v_pk_add_f32 v[{X+k}:{X+k+1}], v[{X+k}:{X+k+1}], v[64:65] op_sel_hi:[1,0] neg_lo:[0,1] neg_hi:[0,1]")
    a(f"v_pk_mul_f32 v[66:67], v[{X}:{X+1}], v[{X}:{X+1}]")
    for k in range(2, 20, 2):
        a(f"v_pk_fma_f32 v[66:67], v[{X+k}:{X+k+1}], v[{X+k}:{X+k+1}], v[66:67]")
    a("v_add_f32 v65, v66, v67")
    a(quad_red("v_add_f32", [65], 66))
    srd_ws(a, 16, SWS, "stats")
    a(f"s_lshr_b32 s6, s{SRB}, 2")
    a("s_lshl_b32 s6, s6, 12")
    a(f"s_lshl_b32 s7, s{S_W}, 8")
    a("s_add_u32 s6, s6, s7")
    a(f"s_lshr_b32 s7, s{SCG}, 1")
    a("s_lshl_b32 s7, s7, 10")
    a("s_add_u32 s6, s6, s7")
    a(f"s_and_b32 s7, s{SCG}, 1")
    a("s_lshl_b32 s7, s7, 3")
    a("s_add_u32 s6, s6, s7")
    a("s_mov_b64 exec, 0xffff")
    a(f"buffer_store_dwordx2 v[64:65], v{VL16}, s[16:19], s6 offen sc1")
    vm.issue("X")
    a("s_mov_b64 exec, -1")
    G.stamp("d3")
    fd.go(OPT.get("w1c", 8))
    a(f"s_lshl_b32 s6, s{SG}, 8")
    a(f"s_add_u32 s6, s6, {FL + 256*F_S5}")
    a(f"v_mov_b32 v{VFL}, s6")
    VEC = 80
    a(f"v_lshrrev_b32 v68, 3, v{VR}")
    a("v_mul_u32_u24 v68, 1280, v68")
    a(f"v_add3_u32 v68, v68, v{VVEC}, s44")
    G.stamp("d4")
    a(vm.wait({"X"}))
    a("s_barrier")
    G.stamp("d5")
    G.arrive_w0(VFL, VONE, SWS)
    a(f"s_cmp_ge_u32 s{SJ}, 14")
    a("s_cbranch_scc1 Lt4pre")
    pA, pB = G.paths
    G.paths = [pA]
    G.label("Lt3")
    fd.go()
    srd_in(a, 12, P("b1"), SZ["b1"])
    a(f"v_lshlrev_b32 v69, 3, v{VQ}")
    a("s_lshl_b32 s6, s49, 5")
    for n in range(2):
        a(f"buffer_load_dwordx2 v[{70+2*n}:{71+2*n}], v69, s[12:15], s6 offen offset:{32*n}")
        vm.issue("B")
    for ks in range(20):
        a(f"ds_read_b128 v[{VEC+4*ks}:{VEC+4*ks+3}], v68 offset:{64*ks}")
        if ks == 9:
            a("s_waitcnt lgkmcnt(4)")
    VXM, VRD = VA, VA + 2
    a(f"s_lshl_b32 s6, s{SG}, 3")
    a(f"s_lshl_b32 s7, s{S_W}, 1")
    a("s_add_u32 s6, s6, s7")
    a("s_mul_i32 s6, s6, 20480")
    a(f"v_add_u32 v{VXM}, s6, v{VL16}")
    a(f"v_add_u32 v{VXM+1}, {20480-1024}, v{VXM}")
    RDV = [VL16, VRD, VRD + 1]
    a(f"v_add_u32 v{VRD}, 65536, v{VL16}")
    a(f"v_add_u32 v{VRD+1}, 131072, v{VL16}")
    a(f"s_lshl_b32 s{SLB}, s{S_W}, 11")
    a(f"s_mov_b32 s{SK}, 0")
    a(f"s_lshl_b32 s42, s{SG}, 13")
    a("s_add_u32 s43, s42, 4096")
    W2V = 176

    def t4_wsetup():
        w_addrs(a, 55296)
        srd_ws(a, RW_, SWS, "w2f")
        a(f"s_mul_i32 s{SWK}, s{S_W}, 14")
        a(f"s_cmp_eq_u32 s{S_W}, 3")
        a(f"s_cselect_b32 s{SWK}, 41, s{SWK}")
        a(f"s_lshl_b32 s{SWK}, s{SWK}, 10")
        a(f"s_mov_b32 s45, s{SWK}")
    t4_wsetup()
    a(G.poll_text(VPL, VFL, SWS))
    vm.issue("pl")
    a(vm.wait({"W1", "B"}, lgkm=0))
    G.stamp("d6")
    CS, TT = 160, 168
    for ks in range(20):
        for n in range(2):
            a(f"{MF} v[{CS+4*n}:{CS+4*n+3}], a[{8*ks+4*n}:{8*ks+4*n+3}], v[{VEC+4*ks}:{VEC+4*ks+3}], "
              f"{'0' if ks == 0 else R('v', CS+4*n, 4)}")
        if ks == OPT.get("cspoll", 9):
            a(vm.wait({"pl"}))
            G.poll_check(VPL, VFL, SWS, 16)
            G.stamp(10)

            def xm_dma(ks):
                m = item(f"s_add_u32 m0, s{SLB}, {8192*ks}")
                L = [m]
                for n in range(2):
                    L.append(vitem(vm, ("A", ks), f"buffer_load_dwordx4 v{VXM+n}, {sr}, s{SK} offen offset:{1024*n}{APOL} lds"))
                L[1]["after"], L[1]["dist"] = m, 1
                L.append(item(f"s_add_u32 s{SK}, s{SK}, 1024"))
                return L
            LEAD = OPT.get("t3lead", 7)
            for k in range(LEAD):
                flat(a, xm_dma(k))
    STT = 80
    stl = [vitem(vm, "S", f"buffer_load_dwordx4 v[{STT+16*b+4*k}:{STT+16*b+4*k+3}], v{VL16}, s[16:19], s{42+b} offen offset:{1024*k} sc1")
           for b in range(2) for k in range(4)]
    sv = [[f"v_cmp_gt_u32 vcc, 8, v{VR}", "s_nop 0"]]
    for k in range(8):
        src = 70 + (k >> 1)
        sv += [f"v_mov_b32_dpp v76, v{CS+k} row_ror:8 row_mask:0xf bank_mask:0xf",
               f"v_cndmask_b32 v{TT+k}, v{CS+k}, v76, vcc", f"v_cndmask_b32 v{CS+k}, v76, v{CS+k}, vcc",
               f"v_lshlrev_b32 v77, 16, v{src}" if k % 2 == 0 else f"v_and_b32 v77, 0xffff0000, v{src}",
               f"v_add_f32 v{TT+k}, v{TT+k}, v77"]
    sv0 = [item(s, 2 if isinstance(s, list) else 1) for s in sv]
    AW = 160

    def reads(ks):
        o = 8192 * ks
        return [f"ds_read_b128 a[{AW+32*(ks&1)+4*r}:{AW+32*(ks&1)+4*r+3}], v{RDV[o // 65536]} offset:{o % 65536 + 1024*r}"
                for r in range(8)]
    RM, RSD = 112, 120
    sv = []
    for b in range(2):
        B = STT + 16 * b
        m, v, t = RM + 4 * b, RSD + 4 * b, 128
        sv.append(f"v_add_f32 v{m}, v{B}, v{B+2}")
        sv += [f"v_add_f32 v{m}, v{m}, v{B+2*k}" for k in range(2, 8)]
        sv.append(f"v_mul_f32 v{m}, 0x3e000000, v{m}")
        sv += [f"v_sub_f32 v{B+2*k}, v{B+2*k}, v{m}" for k in range(8)]
        sv.append(f"v_mul_f32 v{t}, v{B}, v{B}")
        sv += [f"v_fmac_f32 v{t}, v{B+2*k}, v{B+2*k}" for k in range(1, 8)]
        sv.append(f"v_add_f32 v{v}, v{B+1}, v{B+3}")
        sv += [f"v_add_f32 v{v}, v{v}, v{B+2*k+1}" for k in range(2, 8)]
        sv += [f"v_fmac_f32 v{v}, {hex(f32bits(80.0))}, v{t}", f"v_mov_b32 v{t}, {hex(f32bits(1e-5))}",
               f"v_fmac_f32 v{t}, {hex(f32bits(1/640))}, v{v}"]
        sv.append([f"v_rsq_f32 v{v}, v{t}", "s_nop 0"])
        sv.append(f"v_mul_f32 v{m}, v{m}, v{v}")
        for x in (m, v):
            sv.append([f"v_mov_b32 v{x+2}, v{x}", "s_nop 1"])
            sv.append(f"v_permlane32_swap_b32 v{x}, v{x+2}")
            sv.append(f"v_mov_b32 v{x+1}, v{x}")
            sv.append([f"v_mov_b32 v{x+3}, v{x+2}", "s_nop 1"])
            sv.append(f"v_permlane16_swap_b32 v{x}, v{x+1}")
            sv.append(f"v_permlane16_swap_b32 v{x+2}, v{x+3}")
    sv = [item(s, 2 if isinstance(s, list) else 1) for s in sv]

    def w2reg(s, c):
        f = 5 * s + c
        return R("a", 4 * f, 4) if f < 64 else R("v", W2V + 4 * (f - 64), 4)

    def w2_loads(vm):
        L = []
        for s in range(14):
            for c in range(5):
                L.append(vitem(vm, "W2", f"buffer_load_dwordx4 {w2reg(s, c)}, v{VW5+c}, s[{RW_}:{RW_+3}], s{SWK} offen offset:{1024*(s % 4)}"))
            if s % 4 == 3:
                L.append(item(f"s_add_u32 s{SWK}, s{SWK}, 4096"))
        return L
    w2 = w2_loads(vm)
    w2n = 0
    G.stamp("e1")
    a(vm.wait({("A", 0)}))
    a("s_barrier")
    G.stamp("e2")
    a(reads(0))
    for ks in range(20):
        mf = []
        for r in range(8):
            for n in range(2):
                d = 8 * r + 4 * n
                w = AW + 32 * (ks & 1) + 4 * r
                mf.append([f"{MF} {R('v', d, 4)}, a[{8*ks+4*n}:{8*ks+4*n+3}], a[{w}:{w+3}], "
                           f"{'0' if ks == 0 else R('v', d, 4)}", []])
        need = set()
        if ks % 2 == 0:
            need |= {("A", ks + 1), ("A", ks + 2)}
        if ks == 10:
            need.add("S")
        a(vm.wait(need, lgkm=0))
        a(mf.pop(0)[0])
        if ks % 2 == 0:
            a("s_barrier")
        G.stamp(f"k{ks}")
        rd = spread(items(reads(ks + 1), mem=1), 0, 4) if ks < 19 else []
        ld = xm_dma(ks + LEAD) if ks + LEAD < 20 else []
        if 1 <= ks < 5:
            ld += stl[:2]
            stl = stl[2:]
        if ks + LEAD >= 20:
            k = 0
            while w2 and (k < OPT.get("w2in", 4) or w2[0]["c"] == 1) and w2n < 2 * ks:
                it = w2.pop(0)
                ld.append(it)
                k += it["c"] == 2
                w2n += it["c"] == 2
        spread(ld, 3, 13)
        ex = []
        if 5 <= ks < 10:
            k = (len(sv0) + 9 - ks) // (10 - ks)
            ex, sv0 = sv0[:k], sv0[k:]
        if ks >= 10:
            k = (len(sv) + 19 - ks) // (20 - ks)
            ex, sv = sv[:k], sv[k:]
        spread(ex, 2, 13)
        over = schedule(a, mf, [rd, ld, ex])
        if over:
            print("  t3 step", ks, "overflow", over)
    G.stamp(11)
    fd = Feed(a, vm, w2)
    fd.go(OPT.get("w2a", 4))
    G.stamp("f1")
    srd_ws(a, RA_, SWS, "uf")
    a(f"s_lshl_b32 s6, s{SJ}, 2")
    a(f"s_add_u32 s6, s6, s{S_W}")
    a("s_cmp_lt_u32 s6, 54")
    a(f"s_cselect_b32 s{RA_+2}, s{RA_+2}, 0")
    a("s_lshl_b32 s6, s6, 10")
    a(f"s_mul_i32 s7, s{SG}, {8*55296}")
    a("s_add_u32 s42, s6, s7")
    T = 128
    for r in range(8):
        d = T + 8 + 4 * (r % 2)
        rm, rs = RM + r, RSD + r
        for k in range(8):
            a(f"v_fma_f32 v{T+k}, -v{rm}, v{CS+k}, v{TT+k}")
        for k in range(8):
            a(f"v_fmac_f32 v{T+k}, v{rs}, v{8*r+k}")
        for k in range(8):
            a(f"v_max_f32 v{T+k}, 0, v{T+k}")
        for k in range(0, 8, 2):
            a(f"v_pk_mul_f32 v[{T+k}:{T+k+1}], v[{T+k}:{T+k+1}], v[{T+k}:{T+k+1}]")
        for k in range(4):
            a(f"v_cvt_pk_bf16_f32 v{d+k}, v{T+2*k}, v{T+2*k+1}")
        a(f"buffer_store_dwordx4 v[{d}:{d+3}], v{VL16}, {sr}, s42 offen sc1")
        vm.issue("U")
        a("s_add_u32 s42, s42, 55296")
        if r < 7:
            fd.go(OPT.get("w2b", 1))
    G.stamp("f2")
    fd.go(OPT.get("w2c", 10))
    a(f"v_add_u32 v{VFL}, {256*(F_S6 - F_S5)}, v{VFL}")
    G.stamp("f3")
    a(vm.wait({"U"}))
    a("s_barrier")
    G.stamp("f4")
    G.arrive_w0(VFL, VONE, SWS)
    fd.go()
    a("s_branch Lt4")
    G.paths = [pB]
    G.label("Lt4pre")
    a("s_waitcnt vmcnt(0)")
    t4_wsetup()
    vm = VmTrack()
    Feed(a, vm, w2_loads(vm)).go()
    a(f"v_add_u32 v{VFL}, {256*(F_S6 - F_S5)}, v{VFL}")
    a("s_waitcnt vmcnt(0)")
    G.paths = [pA, pB]
    G.label("Lt4")
    a(G.poll_text(VPL, VFL, SWS))
    a_addrs(a, 55296)
    a(f"s_mov_b32 s{SK}, s45")
    srd_ws(a, RA_, SWS, "uf")
    srd_in(a, 16, P("out"), SZ["out"])
    srd_in(a, 12, P("b2"), SZ["b2"])
    a(f"s_add_u32 s42, s{SVO}, {5*2560}")
    a(f"s_mul_i32 s43, s{SCG}, 160")
    a(f"v_lshlrev_b32 v254, 3, v{VQ}")
    a("s_waitcnt vmcnt(0)")
    G.stamp("f5")
    G.poll_check(VPL, VFL, SWS, 14)
    G.stamp(12)
    vm = VmTrack()
    NA = 6

    def act4(s):
        L = []
        for r in range(4):
            b = AR + 16 * (s % NA) + 4 * r
            L.append(vitem(vm, ("A", s), f"buffer_load_dwordx4 v[{b}:{b+3}], v{VA+r}, {sr}, s{SK} offen offset:{1024*(s % 4)}{APOL}"))
        if s % 4 == 3:
            L.append(item(f"s_add_u32 s{SK}, s{SK}, 4096"))
        if s == 12:
            L.append(item([f"s_cmp_ge_u32 s{S_W}, 2", f"s_cselect_b32 s{SK}, 0x40000000, s{SK}"], 2))
        return L
    L4 = OPT.get("t4lead", 4)
    for s in range(L4):
        flat(a, act4(s))
    EG, EB = AR + 32, 200
    epi = []
    for c in range(5):
        epi.append(vitem(vm, "E", f"buffer_load_dwordx4 v[{EG+4*c}:{EG+4*c+3}], v{VVEC}, s[20:23], s42 offen offset:{64*c} sc1"))
        epi.append(vitem(vm, "E", f"buffer_load_dwordx2 v[{EB+2*c}:{EB+2*c+1}], v254, s[12:15], s43 offen offset:{32*c}"))
    for s in range(14):
        mf = []
        for c in range(5):
            for r in range(4):
                d = 20 * r + 4 * c
                b = AR + 16 * (s % NA) + 4 * r
                mf.append([f"{MF} {R('v', d, 4)}, {w2reg(s, c)}, v[{b}:{b+3}], {'0' if s == 0 else R('v', d, 4)}", []])
        if s == 13:
            a(f"s_cmp_ge_u32 s{S_W}, 2")
            a("s_cbranch_scc1 Lt4red")
            G.paths = [pA]
            G.label("Lt4last")
        a(vm.wait({("A", s)}))
        G.stamp(f"u{s}")
        ld = act4(s + L4) if s + L4 < 14 else []
        if s in (10, 11):
            ld, epi = epi[:5], epi[5:]
        schedule(a, mf, [spread(ld, 0, 12)])
    G.paths = [pA, pB]
    G.label("Lt4red")
    G.stamp("g1")
    a("s_nop 7")
    reduce_scatter(a)
    G.stamp("g2")
    a("s_waitcnt vmcnt(0)")
    B = 40
    for j in range(10):
        a(f"v_lshlrev_b32 v{X+2*j}, 16, v{X1+j}")
        a(f"v_and_b32 v{X+2*j+1}, 0xffff0000, v{X1+j}")
        a(f"v_lshlrev_b32 v{B+2*j}, 16, v{EB+j}")
        a(f"v_and_b32 v{B+2*j+1}, 0xffff0000, v{EB+j}")
    for k in range(0, 20, 2):
        a(f"v_pk_add_f32 v[{k}:{k+1}], v[{k}:{k+1}], v[{B+k}:{B+k+1}]")
    for k in range(0, 20, 2):
        a(f"v_pk_fma_f32 v[{X+k}:{X+k+1}], v[{EG+k}:{EG+k+1}], v[{k}:{k+1}], v[{X+k}:{X+k+1}]")
    for j in range(10):
        a(f"v_cvt_pk_bf16_f32 v{60+j}, v{X+2*j}, v{X+2*j+1}")
    for c in range(5):
        a(f"buffer_store_dwordx2 v[{60+2*c}:{61+2*c}], v{VX}, s[16:19], s{SRM} offen offset:{32*c}")
    G.end()
```

```python
class VmTrack:
    def __init__(self, q=None):
        self.q = list(q or [])

    def issue(self, tag):
        self.q.append(tag)

    def count(self, tags):
        last = max((n for n, t in enumerate(self.q) if t in tags), default=-1)
        if last < 0:
            return None
        n = len(self.q) - 1 - last
        self.q = self.q[last + 1:]
        assert n <= 63, n
        return n

    def wait(self, tags, lgkm=None):
        n = self.count(tags)
        parts = []
        if n is not None:
            parts.append(f"vmcnt({n})")
        if lgkm is not None:
            parts.append(f"lgkmcnt({lgkm})")
        return "s_waitcnt " + " ".join(parts) if parts else []


def item(s, c=1, **kw):
    d = dict(s=s, c=c)
    d.update(kw)
    return d


def vitem(vm, tag, s, **kw):
    return item(s, 2, mem=1, tag=tag, cb=(lambda: vm.issue(tag)), **kw)


def emit(a, it):
    if it.get("cb"):
        it["cb"]()
    s = it["s"]
    if callable(s):
        s = s()
    a(s)
    if it.get("then"):
        it["then"]()


def flat(a, L):
    prev = None
    for it in L:
        if prev is not None and it.get("after") is prev and it.get("dist", 1) >= 1:
            a(f"s_nop {it.get('nop', 0)}")
        emit(a, it)
        prev = it


def spread(L, g0, g1):
    tot = sum(i["c"] for i in L) or 1
    acc = 0
    for it in L:
        it["t"] = g0 + (acc * (g1 - g0)) // tot
        it.setdefault("e", g0)
        acc += it["c"]
    return L


TASLACK, TAF = 3, 1.08


def is_scalar(it):
    s = it["s"]
    return isinstance(s, str) and s.startswith("s_") and not s.startswith("s_barrier")


def is_vmem(it):
    s = it["s"]
    return isinstance(s, str) and s.startswith(("buffer_", "global_"))


def rd_w(it):
    s = it["s"]
    if isinstance(s, str) and s.startswith("ds_read_b128"):
        return 2
    if isinstance(s, str) and s.startswith("ds_"):
        return 1
    return 0


def schedule(a, mfmas, streams, base=2, prev_rd=0, ta=None, carry=None):
    n = len(mfmas)
    cs = streams[carry[0]] if carry else None
    streams = [s for s in streams if s]
    total = sum(i["c"] for s in streams for i in s if not is_scalar(i))
    nsc = sum(1 for s in streams for i in s if is_scalar(i))
    nvm = sum(1 for s in streams for i in s if is_vmem(i))
    total += max(0, nsc - max(0, n - nvm) // 2)
    while total > base * n:
        base += 1
    over_full = base > 2
    sc_extra = max(0, nsc - max(0, n - nvm) // 2)
    acc_b = 0.0
    if base > 2:
        print(f"    (schedule: {total} slots for {n} gaps)")
    idx = [0] * len(streams)
    left = sum(i["c"] for s in streams for i in s if not is_scalar(i))
    state = dict(rd=0, prev=prev_rd, novm=False)

    def heads(g, budget):
        out = []
        for si, s in enumerate(streams):
            if idx[si] >= len(s):
                continue
            it = s[idx[si]]
            if it.get("e", 0) > g or it["c"] > budget:
                continue
            af = it.get("after")
            if af is not None and (af.get("g") is None or g < af["g"] + it.get("dist", 1)):
                continue
            w = rd_w(it)
            if w and base == 2 and state["rd"] + state["prev"] + w > 4:
                if not (it.get("d") is not None and it["d"] <= g + it.get("rem", 0) // 2):
                    continue
            if state["novm"] and base == 2 and is_vmem(it):
                continue
            if ta is not None and is_vmem(it) and ta[0] > g + TASLACK:
                continue
            out.append((it.get("t", 0), si, it))
        out.sort(key=lambda x: (x[0], x[1]))
        return out

    for g, (m, prei) in enumerate(mfmas):
        for p in prei:
            a(p() if callable(p) else p)
        a(m)
        if over_full:
            acc_b += (left + sc_extra * (n - g) / n) / (n - g)
            base = max(2, int(acc_b + 0.999))
            acc_b = min(0, acc_b - base) if base > 2 else 0
        budget = base
        chosen = []
        state["prev"], state["rd"], state["novm"] = state["rd"], 0, False

        def take(si, it, free=False):
            nonlocal budget, left
            it["g"] = g
            idx[si] += 1
            if not free:
                budget -= it["c"]
            if not is_scalar(it):
                left -= it["c"]
            state["rd"] += rd_w(it)
            if ta is not None and is_vmem(it):
                ta[0] = max(ta[0], g) + it.get("w", 4) * TAF
            chosen.append((si, it))
        h = heads(g, budget)
        sc = [x for x in h if is_scalar(x[2])]
        first = None
        lead = [x for x in h if x[2].get("lead")]
        if lead and sc and sc[0][2].get("d") is not None and sc[0][2]["d"] <= g:
            lead = []
        if lead:
            take(lead[0][1], lead[0][2])
            first = chosen.pop()
            state["novm"] = True
            sc = []
        if sc:
            due = [x for x in h if x[0] <= g]
            must = sc[0][2].get("d") is not None and sc[0][2]["d"] <= g
            if must or not (due and is_vmem(due[0][2])):
                take(sc[0][1], sc[0][2], free=True)
                first = chosen.pop()
                state["novm"] = True
        while True:
            h = heads(g, budget)
            z = [x for x in h if x[2]["c"] == 0 and x[0] <= g]
            if z:
                take(z[0][1], z[0][2])
                continue
            h = [x for x in h if x[2]["c"] > 0 and not x[2].get("lead")]
            tight = left >= base * (n - g) - 3
            if tight:
                h = [x for x in h if not is_scalar(x[2]) or (x[2].get("d") is not None and x[2]["d"] <= g) or budget % 2 == 1]
            if not h:
                break
            due = [x for x in h if x[0] <= g]
            if budget % 2 == 1 or budget < 2:
                c1 = [x for x in h if x[2]["c"] == 1]
                c1.sort(key=lambda x: (is_scalar(x[2]), rd_w(x[2]) > 0 and state["rd"] > 0 and not x[2].get("urg"), x[0]))
                if c1:
                    take(c1[0][1], c1[0][2])
                    continue
                if budget < 2:
                    break
            cand = due if due else (h if tight else [])
            if not cand:
                break
            t0, si, it = cand[0]
            if it["c"] == 1:
                idx[si] += 1
                it["g"] = g
                state["rd"] += rd_w(it)
                partner = [x for x in heads(g, budget - 1) if x[2]["c"] == 1 and not x[2].get("lead")]
                state["rd"] -= rd_w(it)
                idx[si] -= 1
                it["g"] = None
                c2 = [x for x in (h if tight else due) if x[2]["c"] == 2]
                urgent = it.get("d") is not None and it["d"] <= g + 1 + it.get("rem", 0)
                if not partner and c2 and not urgent:
                    t0, si, it = c2[0]
            take(si, it)
        front, rest = [], []
        for si, it in chosen:
            if it.get("mem") and not any(sj == si or it.get("after") is jt for sj, jt in rest):
                front.append((si, it))
            else:
                rest.append((si, it))
        for si, it in ([first] if first else []) + front + rest:
            emit(a, it)
    over = 0
    if ta is not None:
        ta[0] -= n + 1
    if cs:
        si = [k for k, s in enumerate(streams) if s is cs][0]
        rest = cs[idx[si]:]
        del cs[idx[si]:]
        for it in rest:
            it["e"] = 0
            if it.get("after") is not None and it["after"].get("g") is not None:
                it["after"] = None
        carry[1].extend(rest)
    more = True
    while more:
        more = False
        for si, s in enumerate(streams):
            while idx[si] < len(s):
                it = s[idx[si]]
                af = it.get("after")
                if af is not None and af.get("g") is None:
                    more = True
                    break
                if af is not None and it.get("dist", 1) >= 1 and af["g"] + it.get("dist", 1) > n - 1:
                    a(f"s_nop {it.get('nop', 0)}")
                it["g"] = n
                idx[si] += 1
                over += it["c"]
                emit(a, it)
    for s in streams:
        for it in s:
            if it.get("d") is not None:
                assert it["g"] <= it["d"], ("deadline missed", it, n)
    return over
```

```python
import re


class Asm:
    def __init__(self):
        self.lines = []
        self.blocks = {}
        self.cur = None

    def __call__(self, s):
        if isinstance(s, (list, tuple)):
            for x in s:
                self(x)
            return
        self.lines.append("    " + s)
        if self.cur is not None:
            self.blocks[self.cur].append(s)

    def label(self, l):
        self.lines.append(l + ":")
        self.cur = l
        assert l not in self.blocks, l
        self.blocks[l] = []

    def raw(self, s):
        self.lines.append(s)

    def text(self):
        return "\n".join(self.lines) + "\n"

    def check(self, path, verbose=False):
        ins = []
        for b in path:
            if isinstance(b, tuple):
                name, stop = b
                for s in self.blocks[name]:
                    ins.append((name, s))
                    if stop in s:
                        break
                else:
                    raise Exception(f"stop {stop} not found in {name}")
            else:
                ins += [(b, s) for s in self.blocks[b]]
        return check_stream(ins)


def kernel_header(a, name):
    a.raw(".text")
    a.raw(f".globl {name}")
    a.raw(".p2align 8")
    a.raw(f".type {name},@function")
    a.label(name)


def kernel_desc(a, name, vgpr=512, accum=256, sgpr=102):
    a.raw('.section .rodata,"a"')
    a.raw(".p2align 6")
    a.raw(f".amdhsa_kernel {name}")
    a.raw(f"  .amdhsa_next_free_vgpr {vgpr}")
    a.raw(f"  .amdhsa_next_free_sgpr {sgpr}")
    a.raw(f"  .amdhsa_accum_offset {accum}")
    a.raw("  .amdhsa_group_segment_fixed_size 0")
    a.raw("  .amdhsa_kernarg_size 128")
    a.raw("  .amdhsa_user_sgpr_count 2")
    a.raw("  .amdhsa_user_sgpr_kernarg_segment_ptr 1")
    a.raw("  .amdhsa_system_sgpr_workgroup_id_x 1")
    a.raw("  .amdhsa_float_denorm_mode_32 3")
    a.raw("  .amdhsa_float_denorm_mode_16_64 3")
    a.raw(".end_amdhsa_kernel")


def R(f, b, n=1):
    return f"{f}{b}" if n == 1 else f"{f}[{b}:{b+n-1}]"


_REG = re.compile(r"^-?(?:abs\()?\|?([vas])(?:\[(\d+):(\d+)\]|(\d+))\|?\)?$")
TRANS = ("v_exp_f32", "v_log_f32", "v_rcp_f32", "v_rsq_f32", "v_sqrt_f32", "v_sin_f32", "v_cos_f32")


def regs_of(op):
    op = op.strip()
    if op in ("vcc", "vcc_lo", "vcc_hi"):
        return {("s", "vcc")}
    if op in ("exec", "exec_lo", "exec_hi"):
        return {("s", "exec")}
    if op == "m0":
        return {("s", "m0")}
    m = _REG.match(op)
    if not m:
        return set()
    f = m.group(1)
    if m.group(4) is not None:
        return {(f, int(m.group(4)))}
    return {(f, i) for i in range(int(m.group(2)), int(m.group(3)) + 1)}


def split_ops(rest):
    out, depth, cur = [], 0, ""
    for ch in rest:
        if ch in "[(":
            depth += 1
        if ch in "])":
            depth -= 1
        if ch == "," and depth == 0:
            out.append(cur.strip())
            cur = ""
        else:
            cur += ch
    if cur.strip():
        out.append(cur.strip())
    if out:
        last = out[-1].split()
        mods = last[1:]
        out[-1] = last[0]
    else:
        mods = []
    return out, mods


class I:
    pass


def parse(s):
    s = s.split(";")[0].strip()
    i = I()
    i.text = s
    p = s.split(None, 1)
    i.mn = p[0]
    ops, mods = split_ops(p[1]) if len(p) > 1 else ([], [])
    i.ops, i.mods = ops, mods
    mn = i.mn
    i.kind = "other"
    i.wr, i.rd = set(), set()
    i.slots = 1
    rg = [regs_of(o) for o in ops]
    if mn.startswith("."):
        i.kind = "dir"
        i.slots = 0
    elif mn.startswith("v_mfma"):
        i.kind = "mfma"
        i.wr = rg[0]
        i.A, i.B, i.C = rg[1], rg[2], rg[3]
        i.rd = rg[1] | rg[2] | rg[3]
        i.passes = 8 if "32x32" in mn else 4
    elif mn.startswith("v_"):
        i.kind = "valu"
        i.wr = set(rg[0])
        i.rd = set().union(*rg[1:]) if len(rg) > 1 else set()
        if mn.startswith(("v_fmac", "v_dot2c", "v_writelane", "v_pk_fmac")) or "dpp" in mn or "sdwa" in mn:
            i.rd |= rg[0]
        if mn.startswith("v_permlane") and "swap" in mn:
            i.wr = rg[0] | rg[1]
            i.rd = rg[0] | rg[1]
        if mn.startswith(("v_add_co", "v_sub_co", "v_addc_co", "v_subb_co", "v_subrev_co")):
            i.wr = rg[0] | rg[1]
            i.rd = set().union(*rg[2:])
        if mn.startswith("v_cmpx"):
            i.wr |= {("s", "exec")}
        if mn == "v_nop":
            i.wr = set()
    elif mn.startswith("ds_"):
        i.kind = "ds"
        if mn.startswith(("ds_read", "ds_bpermute", "ds_permute", "ds_swizzle")):
            i.wr = rg[0]
            i.rd = set().union(*rg[1:])
        else:
            i.rd = set().union(*rg)
    elif mn.startswith(("buffer_", "global_")):
        i.kind = "vmem"
        if mn in ("buffer_wbl2", "buffer_inv"):
            pass
        elif "lds" in mods:
            i.rd = set().union(*rg) | {("s", "m0")}
            i.dma = True
        elif "_load" in mn:
            i.wr = rg[0]
            i.rd = set().union(*rg[1:])
            if "d16" in mn:
                i.rd |= rg[0]
        elif "_atomic" in mn:
            i.rd = set().union(*rg)
            if "sc0" in mods:
                i.wr = rg[0]
        else:
            i.rd = set().union(*rg)
            if mn.startswith("buffer_store"):
                i.sdata = rg[0]
            else:
                i.sdata = rg[1]
    elif mn.startswith(("s_load", "s_memtime", "s_memrealtime", "s_buffer_load")):
        i.kind = "smem"
        i.wr = rg[0]
        i.rd = set().union(*rg[1:]) if len(rg) > 1 else set()
    elif mn == "s_waitcnt":
        i.kind = "wait"
        i.vm = i.lg = None
        m = re.search(r"vmcnt\((\d+)\)", s)
        if m:
            i.vm = int(m.group(1))
            assert i.vm <= 63, s
        m = re.search(r"lgkmcnt\((\d+)\)", s)
        if m:
            i.lg = int(m.group(1))
            assert i.lg <= 15, s
    elif mn == "s_nop":
        i.kind = "nop"
        i.slots = int(ops[0], 0) + 1
    elif mn.startswith("s_"):
        i.kind = "salu"
        if mn.startswith(("s_cmp", "s_cbranch", "s_branch", "s_barrier", "s_endpgm", "s_sleep", "s_setprio", "s_bitcmp", "s_setpc")):
            i.rd = set().union(*rg) if rg else set()
        else:
            i.wr = rg[0]
            i.rd = set().union(*rg[1:]) if len(rg) > 1 else set()
            if "saveexec" in mn:
                i.wr |= {("s", "exec")}
            if mn.startswith(("s_addk", "s_mulk")):
                i.rd |= rg[0]
    else:
        raise Exception("unknown instr " + s)
    return i


def check_stream(ins):
    errs = []
    P = [(b, parse(s)) for b, s in ins]
    P = [(b, i) for b, i in P if i.kind != "dir"]
    vmq, lgq = [], []
    hist = []
    pos = 0
    for n, (blk, i) in enumerate(P):
        def err(msg, other=None):
            errs.append(f"[{blk}] #{n} {i.text}  :: {msg}" + (f"  <- {other.text}" if other else ""))
        touched = i.rd | i.wr
        if i.kind == "wait":
            if i.vm is not None:
                while len(vmq) > i.vm:
                    vmq.pop(0)
            if i.lg is not None:
                if any(o.kind == "smem" for o in lgq):
                    if i.lg == 0:
                        lgq.clear()
                else:
                    while len(lgq) > i.lg:
                        lgq.pop(0)
        else:
            for o in vmq + lgq:
                if o.wr & touched:
                    if (o.wr & i.rd) or not (o.kind == i.kind and i.kind in ("ds", "vmem")):
                        err("touches pending load dest", o)
        if i.kind == "vmem":
            vmq.append(i)
            if len(vmq) > 63:
                err("vmcnt overflow (stalls, count saturates?)")
        if i.kind in ("ds", "smem"):
            lgq.append(i)
        for (p, o) in reversed(hist):
            d = pos - p - 1
            if d > 20:
                break
            need = 0
            why = ""
            if o.kind == "valu":
                vw = {r for r in o.wr if r[0] in "va"}
                sw = {r for r in o.wr if r[0] == "s"}
                if i.kind == "mfma" and (vw & i.rd):
                    need, why = 2, "valu->mfma"
                if i.kind == "valu":
                    if i.mn.startswith(("v_readfirstlane", "v_readlane")) and (vw & i.rd):
                        need, why = max(need, 1), "valu->readlane"
                    if i.mn.startswith("v_permlane") and (vw & i.rd):
                        need, why = max(need, 2), "valu->permlane"
                    if "dpp" in i.mn and (vw & i.rd):
                        need, why = max(need, 2), "valu->dpp"
                    if o.mn.startswith(TRANS) and not i.mn.startswith(TRANS) and (vw & i.rd):
                        need, why = max(need, 1), "trans->valu"
                    if "sdwa" in o.mn and (vw & (i.rd | i.wr)) and "dst_sel:DWORD" not in o.text:
                        need, why = max(need, 1), "sdwa->valu"
                    if sw & i.rd:
                        need, why = max(need, 4 if i.mn.startswith(("v_readlane", "v_writelane")) else 2), "valu sgpr->valu"
                    if ("s", "exec") in sw and ("dpp" in i.mn or i.mn.startswith(("v_permlane", "v_readlane", "v_readfirstlane", "v_writelane"))):
                        need, why = max(need, 5), "valu exec->dpp"
                if i.kind == "vmem" and (sw & i.rd):
                    need, why = max(need, 5), "valu sgpr->vmem"
                if i.kind == "mfma" and ("s", "exec") in sw:
                    need, why = max(need, 4), "valu exec->mfma"
            if o.kind == "mfma":
                big = {4: 8, 8: 12}[o.passes]
                if i.kind == "mfma":
                    if o.wr & (i.A | i.B):
                        need, why = big, "mfma D->A/B"
                    elif o.wr & i.C:
                        if not (o.wr == i.C and o.passes == i.passes):
                            need, why = big - 2, "mfma D->C overlap"
                    elif o.wr & i.wr:
                        need, why = big - 2, "mfma WAW (conservative)"
                elif i.kind in ("valu", "ds", "vmem") and (o.wr & touched):
                    need, why = big, "mfma D->valu/mem"
                if i.kind == "valu" and (o.C & i.wr):
                    need, why = max(need, {4: 3, 8: 7}[o.passes]), "mfma C WAR"
            if o.kind == "salu" and ("s", "m0") in o.wr and ("s", "m0") in i.rd and i.kind in ("vmem", "valu"):
                need, why = max(need, 1), "m0"
            if o.kind == "vmem" and hasattr(o, "sdata") and len(o.sdata) >= 3 and (o.sdata & i.wr):
                need, why = max(need, 2 if i.kind in ("valu", "mfma") else 1), "store data WAR"
            if d < need:
                err(f"hazard {why}: need {need} have {d}", o)
        hist.append((pos + i.slots - 1, i))
        if len(hist) > 40:
            hist.pop(0)
        pos += i.slots
    return errs
```

```python
import os
from common import *
from sched import *
from att2 import *

LOG2E = 1.4426950408889634
NAME = "adaLN_cond__compressed_kv_cla__dense_activation_squared_relu__prompt_kernel"
SPIN = 200000
FL = WS["flags"][0]
F_S2, F_S3, F_S4, F_S5, F_S6 = 0, 8, 40, 72, 88
SWS, SDBG = 66, 64
S3ALL = 8
STAMPS = {k: i + 1 for i, k in enumerate(os.environ.get("STAMPS", "1,2,3,4,5,6,7,8,9,10,11,12").split(","))}
STAMPS["13"] = 13
CLK = "s_memtime" if os.environ.get("CYC") else "s_memrealtime"


def P(name):
    return 36 + KA[name] // 4


class Gen:
    def __init__(self):
        self.a = Asm()
        self.paths = [[]]
        self.uid = 0
        self.nst = 0

    def label(self, l, rec=True):
        self.a.label(l)
        if rec:
            for p in self.paths:
                p.append(l)

    def newlab(self, s):
        self.uid += 1
        return f"L{s}{self.uid}"

    def stamp(self, n):
        n = STAMPS.get(str(n))
        if TIMING and n is not None:
            self.a(CLK + " s[94:95]")
            self.a("s_waitcnt lgkmcnt(0)")
            self.a(f"s_mov_b32 s{80+n}, s94")

    def end(self):
        a = self.a
        if TIMING:
            a("s_waitcnt vmcnt(0) lgkmcnt(0)")
            self.stamp(13)
            a("s_mov_b64 exec, -1")
            srd_ws(a, 96, SWS, "tim")
            a("v_mov_b32 v0, 0")
            for n in range(14):
                a(f"v_writelane_b32 v0, s{80+n}, {n}")
            a("v_mbcnt_lo_u32_b32 v1, -1, 0")
            a("v_mbcnt_hi_u32_b32 v1, -1, v1")
            a("v_cmp_gt_u32 vcc, 16, v1")
            a("v_lshlrev_b32 v1, 2, v1")
            a("s_lshl_b32 s100, s2, 2")
            a(f"s_add_u32 s100, s100, s{S_W}")
            a("s_lshl_b32 s100, s100, 6")
            a("s_and_b64 exec, exec, vcc")
            a("buffer_store_dword v0, v1, s[96:99], s100 offen")
        a("s_endpgm")

    def arrive_text(self, vaddr, vone, sbase):
        return ["s_mov_b64 exec, 1", f"global_atomic_add v{vaddr}, v{vone}, s[{sbase}:{sbase+1}] sc1",
                "s_mov_b64 exec, -1"]

    def arrive_w0(self, vaddr, vone, sbase):
        a = self.a
        l = self.newlab("arr")
        a(f"s_cmp_lg_u32 s{S_W}, 0")
        a(f"s_cbranch_scc1 {l}")
        a(self.arrive_text(vaddr, vone, sbase))
        self.label(l)

    def poll_text(self, vdst, vaddr, sbase):
        return f"global_load_dword v{vdst}, v{vaddr}, s[{sbase}:{sbase+1}] sc1"

    def poll_check(self, vdst, vaddr, sbase, target):
        a = self.a
        ok, lp = self.newlab("ok"), self.newlab("sp")
        a(f"v_cmp_gt_u32 vcc, {target}, v{vdst}")
        a("s_mov_b32 s6, 0")
        a("s_cmp_eq_u64 vcc, 0")
        a(f"s_cbranch_scc1 {ok}")
        self.label(lp)
        a(self.poll_text(vdst, vaddr, sbase))
        a("s_waitcnt vmcnt(0)")
        a(f"v_cmp_gt_u32 vcc, {target}, v{vdst}")
        a("s_add_u32 s6, s6, 1")
        a(f"s_cmp_gt_u32 s6, {SPIN}")
        a(f"s_cbranch_scc1 {ok}")
        a("s_cmp_lg_u64 vcc, 0")
        a(f"s_cbranch_scc1 {lp}")
        for p in self.paths:
            p.pop()
        self.label(ok)


def round_pair(d0, d1, tmp):
    return [f"v_cvt_pk_bf16_f32 v{tmp}, v{d0}, v{d1}", f"v_lshlrev_b32 v{d0}, 16, v{tmp}",
            f"v_and_b32 v{d1}, 0xffff0000, v{tmp}"]


def items(L, **kw):
    return [item(s, **kw) for s in L]


def acc_kv(x, y, isV):
    if isV:
        late, k = x >> 2, 8 * ((x >> 1) & 1) + y
    else:
        late, k = y >> 2, 4 * (y & 3) + (x >> 1)
    return ("a" if late else "v", 8 * k + 4 * (x & 1))


def quad_red(op, regs, tmp):
    L = []
    for sw in ("32", "16"):
        L += [f"v_mov_b32 v{tmp+n}, v{r}" for n, r in enumerate(regs)]
        L.append("s_nop 1")
        L += [f"v_permlane{sw}_swap_b32 v{r}, v{tmp+n}" for n, r in enumerate(regs)]
        L += [f"{op} v{r}, v{r}, v{tmp+n}" for n, r in enumerate(regs)]
    return L


VC, VW, VCR, VWR = 192, 196, 200, 204
SPARE = 131072


def gen(G):
    a = G.a
    kernel_header(a, NAME)
    G.paths[0].append(NAME)
    a("s_cmp_ge_u32 s2, 256")
    a("s_cbranch_scc1 Lend")
    if TIMING:
        a(CLK + " s[94:95]")
    a("s_load_dwordx16 s[36:51], s[0:1], 0")
    a("s_load_dwordx16 s[52:67], s[0:1], 64")
    SC0, SW0, SLB, SOUT = 68, 70, 32, 33
    VWA = [204 + k for k in range(8)]
    VWB = [212, 213, 214, 215, 217, 218, 221, 222]
    VPOLL, VONE = 219, 223
    a(f"v_lshrrev_b32 v128, 6, v0")
    a(f"v_and_b32 v{VLANE}, 63, v0")
    a(f"v_readfirstlane_b32 s{S_W}, v128")
    a(f"s_and_b32 s{S_H}, s2, 7")
    a(f"s_lshl_b32 s{S_H}, s{S_H}, 2")
    a(f"s_lshr_b32 s{S_I}, s2, 3")
    a(f"s_and_b32 s{S_I}, s{S_I}, 3")
    a(f"s_add_u32 s{S_H}, s{S_H}, s{S_I}")
    a(f"s_lshr_b32 s{S_I}, s2, 5")
    a(f"v_lshlrev_b32 v{VL16}, 4, v{VLANE}")
    a(f"v_lshrrev_b32 v129, 4, v{VLANE}")
    a("s_mul_i32 s72, s2, 1093")
    a("s_lshr_b32 s72, s72, 16")
    a("s_mul_i32 s73, s72, 60")
    a("s_sub_u32 s73, s2, s73")
    a(f"v_and_b32 v130, 15, v{VLANE}")
    a("v_min_u32 v130, 4, v130")
    a("v_lshlrev_b32 v130, 6, v130")
    a("v_lshl_add_u32 v130, v129, 4, v130")
    a(f"v_lshrrev_b32 v132, 3, v{VLANE}")
    a("v_mul_u32_u24 v131, 7680, v132")
    a(f"v_and_b32 v133, 7, v{VLANE}")
    a("v_lshl_add_u32 v131, v133, 4, v131")
    a("s_mul_i32 s74, s72, 160")
    a(f"s_mul_i32 s75, s{S_W}, 40")
    a("s_add_u32 s75, s75, s74")
    a("s_mul_i32 s75, s75, 7680")
    a("s_lshl_b32 s6, s73, 7")
    a("s_add_u32 s75, s75, s6")
    a("s_lshl_b32 s74, s74, 1")
    a(f"s_mul_i32 s76, s{S_W}, 5120")
    a(f"s_add_u32 s76, s76, {SPARE}")
    a("v_lshlrev_b32 v132, 10, v132")
    a("v_xor_b32 v133, v133, v129")
    a(f"v_lshl_add_u32 v{VC}, v133, 4, v132")
    a(f"v_xor_b32 v{VC+1}, 64, v{VC}")
    a(f"v_add_u32 v{VC+1}, {8192-1024}, v{VC+1}")
    a(f"v_add_u32 v{VC+2}, {2*(8192-1024)}, v{VC}")
    a(f"v_add_u32 v{VC+3}, {2*(8192-1024)}, v{VC+1}")
    a(f"v_lshrrev_b32 v133, 1, v{VLANE}")
    a("v_and_b32 v133, 7, v133")
    a("v_xor_b32 v133, v133, v129")
    a("v_lshlrev_b32 v133, 5, v133")
    a(f"v_and_b32 v134, 1, v{VLANE}")
    a("v_lshl_add_u32 v133, v134, 4, v133")
    a(f"v_lshl_add_u32 v{VW}, v129, 13, v133")
    a(f"v_add_u32 v{VW+1}, {32768-1024}, v{VW}")
    a(f"v_xor_b32 v{VW+2}, 128, v{VW}")
    a(f"v_add_u32 v{VW+3}, {3*(32768-1024)}, v{VW+2}")
    a(f"v_add_u32 v{VW+2}, {2*(32768-1024)}, v{VW+2}")
    a(f"s_lshl_b32 s{SC0}, s{S_I}, 17")
    a(f"s_lshr_b32 s6, s{S_W}, 1")
    a("s_lshl_b32 s6, s6, 16")
    a(f"s_add_u32 s{SC0}, s{SC0}, s6")
    a(f"s_and_b32 s7, s{S_W}, 1")
    a("s_lshl_b32 s6, s7, 20")
    a(f"s_add_u32 s{SC0}, s{SC0}, s6")
    a(f"s_add_u32 s{SC0+1}, s{SC0}, 32768")
    a(f"s_lshl_b32 s{SW0}, s7, 18")
    a(f"s_lshl_b32 s6, s{S_H}, 8")
    a(f"s_add_u32 s{SW0}, s{SW0}, s6")
    a(f"s_add_u32 s{SW0+1}, s{SW0}, 131072")
    a(f"s_lshl_b32 s{SLB}, s{S_W}, 13")
    VPC, VPW, SPC, SPW = 254, 255, 34, 35
    a(f"v_lshrrev_b32 v{VPC}, 2, v{VLANE}")
    a(f"v_lshlrev_b32 v{VPC}, 10, v{VPC}")
    a(f"v_lshrrev_b32 v{VPW}, 3, v{VLANE}")
    a(f"v_and_b32 v{VPW}, 1, v{VPW}")
    a(f"v_lshlrev_b32 v{VPW}, 7, v{VPW}")
    a(f"v_lshl_add_u32 v{VPW}, v129, 13, v{VPW}")
    a(f"v_and_b32 v134, 3, v{VLANE}")
    a(f"v_lshl_add_u32 v144, v134, 7, v{VPC}")
    a(f"v_lshl_add_u32 v145, v134, 19, v{VPW}")
    a(f"s_lshl_b32 s{SPC}, s{S_I}, 17")
    a(f"s_bfe_u32 s6, s{S_H}, 0x10001")
    a("s_lshl_b32 s6, s6, 16")
    a(f"s_add_u32 s{SPC}, s{SPC}, s6")
    a(f"s_and_b32 s6, s{S_H}, 1")
    a("s_lshl_b32 s6, s6, 20")
    a(f"s_add_u32 s{SPC}, s{SPC}, s6")
    a(f"s_lshl_b32 s6, s{S_W}, 14")
    a(f"s_add_u32 s{SPC}, s{SPC}, s6")
    a(f"s_lshl_b32 s{SPW}, s{S_I}, 1")
    a(f"s_add_u32 s{SPW}, s{SPW}, s7")
    a(f"s_lshl_b32 s{SPW}, s{SPW}, 15")
    a(f"s_lshl_b32 s6, s{S_H}, 8")
    a(f"s_add_u32 s{SPW}, s{SPW}, s6")
    a("s_waitcnt lgkmcnt(0)")
    if TIMING:
        a("s_mov_b32 s80, s94")
        for n in range(1, 14):
            a(f"s_mov_b32 s{80+n}, 0")
    vm = VmTrack()
    srd_in(a, 24, P("c"), SZ["c"])
    a("buffer_load_dwordx4 v[136:139], v130, s[24:27], s74 offen")
    vm.issue("c")
    srd_in(a, 8, P("ckv"), SZ["ckv"])
    a(f"s_cmp_ge_u32 s{S_W}, 2")
    a(f"s_cselect_b32 s12, s{P('wuv')}, s{P('wuk')}")
    a(f"s_cselect_b32 s13, s{P('wuv')+1}, s{P('wuk')+1}")
    a("s_and_b32 s13, s13, 0xffff")
    a(f"s_mov_b32 s14, {SZ['wuk']}")
    a("s_mov_b32 s15, 0x20000")

    if OPT["prefetch"]:
        a(f"buffer_load_dword v146, v145, s[12:15], s{SPW} offen")
        a(f"buffer_load_dword v146, v144, s[8:11], s{SPC} offen")
        vm.issue("pf")
        vm.issue("pf")
        a(f"s_add_u32 s{SPW}, s{SPW}, {4 << 19}")
    srd_in(a, 16, P("wmod"), SZ["wmod"])
    for n in range(5):
        a(f"s_add_u32 m0, s76, {1024*n}")
        a(f"s_add_u32 s6, s75, {8*7680*n}")
        a("buffer_load_dwordx4 v131, s[16:19], s6 offen lds")
        vm.issue("G")

    def dma_tile(vm, t):
        st = (t & 1) * 65536
        L = []
        for (vb, srd, so, lo) in ((VC, 8, SC0, 0), (VW, 12, SW0, 32768)):
            for half in range(2):
                m = item(f"s_add_u32 m0, s{SLB}, {st + lo + half*4096}")
                L.append(m)
                for n in range(4):
                    it = vitem(vm, ("T", t), f"buffer_load_dwordx4 v{vb+n}, s[{srd}:{srd+3}], s{so+half} offen offset:{1024*n} lds")
                    if n == 0:
                        it["after"], it["dist"] = m, 1
                    L.append(it)
        L += items([f"s_add_u32 s{SC0}, s{SC0}, 128", f"s_add_u32 s{SC0+1}, s{SC0+1}, 128",
                    f"s_add_u32 s{SW0}, s{SW0}, {64*8192}", f"s_add_u32 s{SW0+1}, s{SW0+1}, {64*8192}"])
        return L
    flat(a, dma_tile(vm, 0))
    a(f"v_mov_b32 v{VONE}, 1")
    a("s_mul_i32 s6, s72, 20")
    a("s_add_u32 s6, s6, s73")
    a("s_lshl_b32 s6, s6, 8")
    a(f"s_add_u32 s6, s6, {FL}")
    a(f"v_mul_u32_u24 v134, {80*256}, v{VLANE}")
    a("v_add_u32 v134, s6, v134")
    for r in range(140, 144):
        a(f"v_mov_b32 v{r}, 0")
    a("s_cmp_lt_u32 s73, 20")
    a("s_cselect_b32 s77, 0, 128")
    a("s_cselect_b32 s6, 0, 1")
    a(f"s_or_b32 s6, s6, s{S_W}")
    a("s_lshr_b32 s7, s72, 2")
    a("s_or_b32 s6, s6, s7")
    a("s_cmp_lg_u32 s6, 0")
    a("s_cbranch_scc1 Lnozero")
    a("s_mov_b64 exec, 3")
    a(f"global_store_dwordx4 v134, v[140:143], s[{SWS}:{SWS+1}] sc1")
    a("s_mov_b64 exec, -1")
    G.label("Lnozero")
    a("s_nop 1")
    a(f"s_lshl_b32 s6, s{S_I}, 4")
    a(f"s_add_u32 s6, s6, s{S_H}")
    a(f"s_sub_u32 s7, 14, s{S_I}")
    a("s_lshl_b32 s7, s7, 4")
    a(f"s_add_u32 s7, s7, s{S_H}")
    a(f"s_cmp_lt_u32 s{S_H}, 16")
    a("s_cselect_b32 s6, s6, s7")
    a("s_lshl_b32 s6, s6, 1")
    a(f"s_and_b32 s7, s{S_W}, 1")
    a("s_add_u32 s6, s6, s7")
    a("s_mul_i32 s78, s6, 5120")
    a(f"v_and_b32 v134, 15, v{VLANE}")
    a("v_lshrrev_b32 v135, 1, v134")
    a("v_xor_b32 v135, v135, v129")
    a("v_lshlrev_b32 v135, 4, v135")
    a("v_lshl_add_u32 v135, v134, 7, v135")
    a(f"s_and_b32 s7, s{S_W}, 1")
    a("s_lshl_b32 s6, s7, 14")
    a(f"v_add_u32 v{VCR}, s6, v135")
    a(f"v_xor_b32 v{VCR+1}, 64, v{VCR}")
    a(f"v_add_u32 v{VCR+2}, 65536, v{VCR}")
    a(f"v_add_u32 v{VCR+3}, 65536, v{VCR+1}")
    a(f"v_lshrrev_b32 v134, 2, v{VLANE}")
    a("v_and_b32 v135, 3, v134")
    a("v_lshl_add_u32 v135, v129, 3, v135")
    a(f"v_and_b32 v142, 3, v{VLANE}")
    a("v_lshlrev_b32 v142, 3, v142")
    a("v_lshl_add_u32 v143, v135, 7, v142")
    a("v_lshl_add_u32 v135, v135, 8, v142")
    a("v_and_b32 v134, 7, v134")
    a("v_lshl_add_u32 v135, v134, 5, v135")
    a(f"s_lshr_b32 s6, s{S_W}, 1")
    a("s_lshl_b32 s6, s6, 14")
    a("s_add_u32 s6, s6, 32768")
    a("v_add_u32 v135, s6, v135")
    for db in range(8):
        a(f"v_xor_b32 v{VWA[db]}, {32*db}, v135")
        a(f"v_add_u32 v{VWB[db]}, 65536, v{VWA[db]}")
    a(f"s_cmp_ge_u32 s{S_W}, 2")
    a(f"s_mov_b32 s6, {WS['kf'][0]}")
    a(f"s_cselect_b32 s6, {WS['vf'][0]}, s6")
    a(f"s_add_u32 s28, s{SWS}, s6")
    a(f"s_addc_u32 s29, s{SWS+1}, 0")
    a("s_and_b32 s29, s29, 0xffff")
    a(f"s_mov_b32 s30, {WS['kf'][1]}")
    a("s_mov_b32 s31, 0x20000")
    a(f"s_mul_i32 s{SOUT}, s{S_H}, {HSTR}")
    a(f"s_lshl_b32 s6, s{S_I}, 15")
    a(f"s_add_u32 s{SOUT}, s{SOUT}, s6")
    a("s_lshl_b32 s6, s7, 14")
    a(f"s_add_u32 s{SOUT}, s{SOUT}, s6")
    srd_ws(a, 20, SWS, "modp")
    G.stamp("pre")
    a(vm.wait({"c", "pf"}))
    G.stamp("c")
    for j in range(4):
        a(f"v_lshlrev_b32 v{144+2*j}, 16, v{136+j}")
        a(f"v_and_b32 v{145+2*j}, 0xffff0000, v{136+j}")
    for j in range(8):
        a(f"v_mul_f32 v{152+j}, {hex(f32bits(-LOG2E))}, v{144+j}")
    for j in range(8):
        a(f"v_exp_f32 v{152+j}, v{152+j}")
    for j in range(8):
        a(f"v_add_f32 v{152+j}, 1.0, v{152+j}")
    for j in range(8):
        a(f"v_rcp_f32 v{152+j}, v{152+j}")
    for j in range(8):
        a(f"v_mul_f32 v{152+j}, v{144+j}, v{152+j}")
    for j in range(4):
        a(f"v_cvt_pk_bf16_f32 v{136+j}, v{152+2*j}, v{153+2*j}")
    a(f"s_lshl_b32 s6, s{S_W}, 9")
    a(f"s_add_u32 s6, s6, {SPARE + 20480}")
    a("v_add_u32 v130, s6, v130")
    a("ds_write_b128 v130, v[136:139]")
    a("v_lshl_add_u32 v130, v129, 4, s6")
    a(f"s_lshl_b32 s6, s{S_W}, 5")
    a(f"s_add_u32 s6, s6, {SPARE}")
    a("v_add_u32 v143, s6, v143")
    a(vm.wait({"G"}, lgkm=0))
    a("s_barrier")
    G.stamp("g")
    for ks in range(5):
        a(f"ds_read_b128 v[{144+4*ks}:{147+4*ks}], v130 offset:{64*ks}")
        a(f"ds_read_b64_tr_b16 v[{164+4*ks}:{165+4*ks}], v143 offset:{4096*ks}")
        a(f"ds_read_b64_tr_b16 v[{166+4*ks}:{167+4*ks}], v143 offset:{4096*ks+512}")
    a("s_mul_i32 s6, s72, 15360")
    a("s_lshl_b32 s7, s73, 8")
    a("s_add_u32 s6, s6, s7")
    a(f"s_lshl_b32 s7, s{S_W}, 6")
    a("s_add_u32 s6, s6, s7")
    a(f"v_lshlrev_b32 v134, 2, v{VLANE}")
    a("s_waitcnt lgkmcnt(0)")
    for ks in range(5):
        a(f"{MF} v[184:187], v[{144+4*ks}:{147+4*ks}], v[{164+4*ks}:{167+4*ks}], {'0' if ks == 0 else 'v[184:187]'}")
    a("s_nop 7")
    a("s_mov_b64 exec, 0xffff")
    a("buffer_store_dword v184, v134, s[20:23], s6 offen sc1")
    vm.issue("P")
    a("s_mov_b64 exec, -1")
    flat(a, dma_tile(vm, 1))
    def pf(vm, t, junk=SPARE + 8192):
        if not OPT["prefetch"] or t > 7:
            return []
        m = item(f"s_mov_b32 m0, {junk}")
        return [m, vitem(vm, "pf", f"buffer_load_dword v{VPC}, s[8:11], s{SPC} offen offset:{128*t} lds", after=m, dist=1),
                vitem(vm, "pf", f"buffer_load_dword v{VPW}, s[12:15], s{SPW} offen lds"),
                item(f"s_add_u32 s{SPW}, s{SPW}, {1 << 19}")]
    a(f"s_cmp_ge_u32 s{S_W}, 2")
    a("s_cbranch_scc1 LkvV")

    SWQ, SLQ, SHO = 58, 59, 42
    SBLK = 72
    SRD_WQ, SRD_H = 16, 76
    VWD, VH = VW, VW + 2
    VQR = VWA
    HSLOT = [("v", 224), ("v", 240), ("a", 160), ("a", 176), ("a", 128), ("a", 144)]
    AWB = [192, 224]

    HPOL = [" sc1", " sc1 nt", " nt", ""][OPT.get("hpol", 0)]

    def wq_slot(ks):
        return 8192 * ks if ks < 8 else 131072 + 8192 * (ks - 8) if ks < 12 else 65536 + 8192 * (ks - 12)
    HS = {k: HSLOT[k] for k in range(6)}

    def w_dma(vm, ks):
        m = item(f"s_add_u32 m0, s{SLQ}, {wq_slot(ks)}")
        L = [m]
        for n in range(2):
            L.append(vitem(vm, ("W", ks), f"buffer_load_dwordx4 v{VWD+n}, s[{SRD_WQ}:{SRD_WQ+3}], s{SWQ} offen offset:{1024*n} lds"))
        L[1]["after"], L[1]["dist"] = m, 1
        L.append(item(f"s_add_u32 s{SWQ}, s{SWQ}, {32*8192}"))
        return L

    def h_load(vm, ks):
        L = []
        f, b = HS[ks]
        for g in range(4):
            L.append(vitem(vm, ("H", ks), f"buffer_load_dwordx4 {R(f, b+4*g, 4)}, v{VH}, s[{SRD_H}:{SRD_H+3}], s{SHO+g} offen offset:{256*(ks % 16)}{HPOL}"))
            if ks == 15:
                L.append(item(f"s_add_u32 s{SHO+g}, s{SHO+g}, 4096"))
        return L

    def wq_reads(ks):
        L = []
        o = wq_slot(ks) - (0 if ks < 8 else 131072 if ks < 12 else 65536)
        for db in range(8):
            r = AWB[ks & 1] + 4 * db
            if ks == 8:
                L.append(f"v_add_u32 v{VQR[db]}, 131072, v{VQR[db]}")
            if ks == 12:
                L.append(f"v_subrev_u32 v{VQR[db]}, 65536, v{VQR[db]}")
            L.append(f"ds_read_b64_tr_b16 a[{r}:{r+1}], v{VQR[db]} offset:{o}")
            L.append(f"ds_read_b64_tr_b16 a[{r+2}:{r+3}], v{VQR[db]} offset:{o+1024}")
        return L

    def srd_items(f, *args):
        t = Asm()
        t.cur = None
        f(t, *args)
        return items([l.strip() for l in t.lines])

    def qsetup_scalar():
        L = srd_items(srd_ws, SRD_H, SWS, "hf")
        S = [f"s_lshl_b32 s{SBLK}, s{S_I}, 3", f"s_add_u32 s{SBLK}, s{SBLK}, s{S_W}", f"s_add_u32 s{SBLK+1}, s{SBLK}, 4",
             f"s_sub_u32 s{SBLK+2}, 15, s{S_I}", f"s_lshl_b32 s{SBLK+2}, s{SBLK+2}, 3",
             f"s_add_u32 s{SBLK+2}, s{SBLK+2}, s{S_W}", f"s_add_u32 s{SBLK+3}, s{SBLK+2}, 4"]
        S += [f"s_mul_i32 s{SHO+g}, s{SBLK+g}, 20480" for g in range(4)]
        S += [f"s_lshl_b32 s{SWQ}, s{S_W}, 16", f"s_lshl_b32 s{SLQ}, s{S_H}, 8", f"s_add_u32 s{SWQ}, s{SWQ}, s{SLQ}",
              f"s_lshl_b32 s{SLQ}, s{S_W}, 11"]
        out = []
        for it in L:
            if it["s"].startswith("s_addc"):
                out[-1] = item([out[-1]["s"], it["s"]], 2)
            else:
                out.append(it)
        return out + items(S)

    def glue(L):
        out = []
        for it in L:
            s = it["s"]
            if isinstance(s, str) and s.startswith(("s_addc", "s_cselect")):
                p = out[-1]["s"]
                p = p if isinstance(p, list) else [p]
                out[-1] = item(p + [s], 2)
            else:
                out.append(it)
        return out

    ST = 128

    def kv_reads(ks, isV):
        t, k = ks >> 1, ks & 1
        st = t & 1
        base = ST + 64 * (~ks & 1)
        cb = base + (0 if isV else 32)
        wb = base + (32 if isV else 0)
        Lc = [f"ds_read_b128 a[{cb+4*y}:{cb+4*y+3}], v{VCR+2*st+k} offset:{2048*y}" for y in range(8)]
        Lw = []
        for db in range(8):
            v = (VWB if st else VWA)[db]
            Lw.append(f"ds_read_b64_tr_b16 a[{wb+4*db}:{wb+4*db+1}], v{v} offset:{8192*k}")
            Lw.append(f"ds_read_b64_tr_b16 a[{wb+4*db+2}:{wb+4*db+3}], v{v} offset:{8192*k+1024}")
        return (Lw + Lc) if isV else (Lc + Lw)

    vm0 = list(vm.q)
    path0 = list(G.paths[0])
    endq = []
    allpaths = []
    for isV in (False, True):
        vm = VmTrack(vm0)
        G.paths = [list(path0)]
        G.label("LkvV" if isV else "LkvK")
        side = {k: dict(pre=[], cold=[], post=[], need=set(), code=None) for k in range(16)}
        side[0]["cold"] += pf(vm, 4)
        side[0]["coldend"] = 24
        for k in (1, 3, 5):
            side[k]["cold"] += pf(vm, (k + 9) // 2)
        XN, MA = 128, [168 + 4 * k for k in range(6)] + [224 + 4 * k for k in range(6)]
        if not isV:
            srd_in(a, 24, P("x"), SZ["x"])
            a(f"v_and_b32 v252, 3, v{VLANE}")
            a("v_mul_u32_u24 v252, 1280, v252")
            a(f"v_lshrrev_b32 v253, 2, v{VLANE}")
            a("v_lshl_add_u32 v252, v253, 4, v252")
            a(f"v_lshlrev_b32 v253, 5, v253")
            a(f"v_add_u32 v253, {SPARE}, v253")
            side[0]["cold"] += [vitem(vm, "X", f"buffer_load_dwordx4 v[{MA[n]}:{MA[n]+3}], v252, s[24:27], s78 offen offset:{256*n}")
                                for n in range(5)]
            side[3]["need"].add("X")
            L = []
            for n in range(5):
                for j in range(4):
                    L += [f"v_lshlrev_b32 v{XN+8*n+2*j}, 16, v{MA[n]+j}", f"v_and_b32 v{XN+8*n+2*j+1}, 0xffff0000, v{MA[n]+j}"]
            L.append(f"v_add_f32 v248, v{XN}, v{XN+1}")
            L += [f"v_add_f32 v248, v248, v{XN+j}" for j in range(2, 40)]

            def rowred(r):
                o = []
                for sh in (4, 8):
                    o.append(item(["s_nop 1", f"v_add_f32_dpp v{r}, v{r}, v{r} row_ror:{sh} row_mask:0xf bank_mask:0xf"], 2))
                for sw in ("32", "16"):
                    o.append(item([f"v_mov_b32 v250, v{r}", "s_nop 1"], 2))
                    o.append(item([f"v_permlane{sw}_swap_b32 v{r}, v250", f"v_add_f32 v{r}, v{r}, v250"], 2))
                return o
            side[2]["post"] = items(["v_mov_b32 v251, 0", f"v_lshrrev_b32 v252, 5, v{VLANE}", f"v_lshl_add_u32 v252, v252, 30, v{VL16}"])
            side[3]["cold"] += [vitem(vm, "p1", G.poll_text(VPOLL, 251, SDBG), e=OPT.get("p1e", 50))]
            side[3]["post"] = items(L[:44])
            side[4]["post"] = items(L[44:]) + rowred(248) + items([f"v_mul_f32 v248, {hex(f32bits(1/640))}, v248"])
            side[5]["need"].add("p1")

            def s1_check():
                G.poll_check(VPOLL, 251, SDBG, 80)
                a(f"s_cmp_lg_u32 s{S_W}, 0")
                a("s_cbranch_scc1 Lnoreg")
                a("s_getreg_b32 s6, hwreg(HW_REG_XCC_ID, 0, 4)")
                a("s_cmp_lt_u32 s6, 8")
                a("s_cselect_b32 s48, 1, 0")
                a("s_mov_b32 s49, 0")
                a("s_lshl_b32 s7, s6, 2")
                a("s_lshl_b32 s7, s48, s7")
                a("v_mov_b32 v249, s7")
                a(f"s_lshl_b32 s7, s{S_H}, 8")
                a(f"s_add_u32 s7, s7, {FL + 256*F_S3 + 4}")
                a("v_mov_b32 v250, s7")
                a(G.arrive_text(250, 249, SWS))
                a("s_lshl_b32 s6, s6, 3")
                a("s_lshl_b64 s[48:49], s[48:49], s6")
                a("s_and_b32 s6, s2, 7")
                a("s_lshl_b32 s6, s6, 1")
                a("s_bfe_u32 s7, s2, 0x10003")
                a("s_add_u32 s6, s6, s7")
                a("s_lshl_b32 s6, s6, 8")
                a(f"s_add_u32 s6, s6, {FL + 256*F_S5 + 8}")
                a("v_mov_b32 v249, s6")
                a("v_mov_b32 v250, s48")
                a("v_mov_b32 v251, s49")
                a("s_mov_b64 exec, 1")
                a(f"global_atomic_add_x2 v249, v[250:251], s[{SWS}:{SWS+1}] sc1")
                a("s_mov_b64 exec, -1")
                G.label("Lnoreg")
            side[5]["code"] = s1_check
            Lm = [item(f"s_mul_i32 s48, s{S_W}, 2560")]
            for p in range(4):
                for rnd in range(3):
                    r = MA[3 * p + rnd]
                    Lm.append(vitem(vm, "M", f"buffer_load_dwordx4 v[{r}:{r+3}], v{VL16 if rnd < 2 else 252}, s[20:23], s48 offen offset:{1024*rnd} sc1"))
                if p < 3:
                    Lm.append(item("s_add_u32 s48, s48, 15360"))
            side[5]["pre"] += Lm
            side[4]["post"] += items([f"v_sub_f32 v{XN+j}, v{XN+j}, v248" for j in range(40)])
            L2 = [f"v_mul_f32 v249, v{XN}, v{XN}"] + [f"v_fmac_f32 v249, v{XN+j}, v{XN+j}" for j in range(1, 40)]
            side[5]["post"] = items(L2[:30])
            L7 = items(L2[30:]) + rowred(249)
            L7 += items([f"v_mov_b32 v250, {hex(f32bits(1e-5))}", f"v_fmac_f32 v250, {hex(f32bits(1/640))}, v249"])
            L7 += [item(["v_rsq_f32 v249, v250", "s_nop 0"], 2)]
            L7 += items([f"v_mul_f32 v{XN+j}, v249, v{XN+j}" for j in range(16)])
            L7 += glue(srd_items(srd_ws, 24, SWS, "hf")) + items(["s_add_u32 s79, s78, 4096"])
            side[6]["need"].add("M")
            side[5]["post"] += glue(items([f"s_cmp_eq_u32 s{S_W}, 1", "s_cselect_b32 s39, 1.0, 0"])) + \
                items([f"s_mov_b32 s49, {hex(f32bits(QSCALE))}", f"s_mul_i32 s60, s{S_W}, 3072",
                       f"s_add_u32 s60, s60, {SPARE}", f"v_add_u32 v251, s60, v{VL16}"])
            F = []
            for rnd in range(3):
                b = MA[rnd]
                T = []
                for t in range(4):
                    T += [f"v_add_f32 v{b+t}, v{b+t}, v{MA[3+rnd]+t}", f"v_add_f32 v{MA[6+rnd]+t}, v{MA[6+rnd]+t}, v{MA[9+rnd]+t}",
                          f"v_add_f32 v{b+t}, v{b+t}, v{MA[6+rnd]+t}"]
                T += round_pair(b, b + 1, 250) + round_pair(b + 2, b + 3, 250)
                T += [f"v_add_f32 v{b+t}, s39, v{b+t}" for t in range(4)]
                T += round_pair(b, b + 1, 250) + round_pair(b + 2, b + 3, 250)
                T += [f"v_mul_f32 v{b+t}, s49, v{b+t}" for t in range(4)]
                T += [f"ds_write_b128 v251, v[{b}:{b+3}] offset:{1024*rnd}"]
                F += items(T)
            side[6]["post"] = F

            def ab_reads(ns):
                o = []
                for k, n in enumerate(ns):
                    for q, off in enumerate((512 * n, 512 * n + 16, 3072 + 512 * n, 3072 + 512 * n + 16)):
                        r = MA[4 * k + q]
                        o.append(item(f"ds_read_b128 v[{r}:{r+3}], v253 offset:{off}", mem=1))
                return o

            def h_calc(ns, k0=0):
                o = []
                for k, n in enumerate(ns):
                    k += k0
                    for t in range(8):
                        sh = MA[4 * k + (t >> 2)] + (t & 3)
                        sc = MA[4 * k + 2 + (t >> 2)] + (t & 3)
                        o.append(item(f"v_fmac_f32 v{sh}, v{XN+8*n+t}, v{sc}"))
                    for t in range(4):
                        sh = MA[4 * k + (t >> 1)] + 2 * (t & 1)
                        o.append(item(f"v_cvt_pk_bf16_f32 v{XN+8*n+t}, v{sh}, v{sh+1}"))
                    o.append(vitem(vm, "Hs", f"buffer_store_dwordx4 v[{XN+8*n}:{XN+8*n+3}], v{VL16}, s[24:27], "
                                             f"s{78 if n < 4 else 79} offen offset:{1024*(n % 4)} sc1"))
                return o
            side[7]["post"] = ab_reads([0, 1, 2]) + L7
            side[8]["post"] = h_calc([0, 1]) + ab_reads([3, 4]) + \
                items([f"v_mul_f32 v{XN+j}, v249, v{XN+j}" for j in range(16, 40)]) + h_calc([2], 2) + \
                [item("s_waitcnt lgkmcnt(0)", 0, e=40)] + h_calc([3, 4])
            side[8]["rdend"] = 32
            L9 = items([f"s_lshl_b32 s48, s{S_I}, 8", f"s_add_u32 s48, s48, {FL + 256*F_S2}", "v_mov_b32 v251, s48"])
            L9 += [item(lambda: [vm.wait({"Hs"})] + G.arrive_text(251, VONE, SWS), 2, e=52)]
            side[9]["post"] = L9
        else:
            a(f"s_lshl_b32 s38, s2, 1")
            a(f"s_and_b32 s6, s{S_W}, 1")
            a("s_add_u32 s38, s38, s6")
            FD = 168
            side[6]["post"] += [item("v_mov_b32 v251, 128")]
            side[7]["cold"] += [vitem(vm, "p1", G.poll_text(VPOLL, 251, SDBG))]
            side[9]["need"].add("p1")
            def fin_check():
                a("s_cmp_ge_u32 s38, 10")
                a("s_cbranch_scc1 Lfinskip")
                G.poll_check(VPOLL, 251, SDBG, 160)
                G.label("Lfinskip")
            side[9]["code"] = fin_check
            S = glue(items(["s_cmp_lt_u32 s38, 10", "s_cselect_b32 s22, s22, 0", "s_lshl_b32 s48, s38, 10",
                            "s_add_u32 s48, s48, 5120", "s_mov_b32 s49, s48"]))
            for p in range(4):
                S.append(vitem(vm, "Fm", f"buffer_load_dwordx4 v[{FD+4*p}:{FD+4*p+3}], v{VL16}, s[20:23], s49 offen sc1"))
                S.append(item("s_add_u32 s49, s49, 15360"))
            side[9]["cold"] += S
            side[12]["need"].add("Fm")
            T = []
            for t in range(4):
                T += [f"v_add_f32 v{FD+t}, v{FD+t}, v{FD+4+t}", f"v_add_f32 v{FD+8+t}, v{FD+8+t}, v{FD+12+t}",
                      f"v_add_f32 v{FD+t}, v{FD+t}, v{FD+8+t}"]
            T += round_pair(FD, FD + 1, 165) + round_pair(FD + 2, FD + 3, 165)
            T += ["s_lshl_b32 s49, s38, 6", "s_sub_u32 s49, s49, 160", f"v_add_u32 v184, s49, v{VLANE}",
                  "v_subrev_u32 v185, 160, v184", "v_cmp_gt_u32 vcc, 160, v185"]
            T2 = items(T) + [item(["s_nop 1", "v_cndmask_b32 v186, 0, 1.0, vcc"], 2),
                             item("v_cndmask_b32 v185, v184, v185, vcc"),
                             item("v_mov_b32 v187, 1280"), item("v_cndmask_b32 v187, v187, 0, vcc")]
            T = [f"v_add_f32 v{FD+t}, v186, v{FD+t}" for t in range(4)]
            T += [f"v_cvt_pk_bf16_f32 v188, v{FD}, v{FD+1}", f"v_cvt_pk_bf16_f32 v189, v{FD+2}, v{FD+3}",
                  f"v_lshlrev_b32 v{FD}, 16, v188", f"v_and_b32 v{FD+1}, 0xffff0000, v188",
                  f"v_lshlrev_b32 v{FD+2}, 16, v189", f"v_and_b32 v{FD+3}, 0xffff0000, v189",
                  "v_lshrrev_b32 v190, 3, v185", "v_lshl_add_u32 v187, v190, 6, v187",
                  "v_and_b32 v190, 3, v185", "v_lshl_add_u32 v187, v190, 4, v187",
                  "v_and_b32 v190, 4, v185", "v_lshl_add_u32 v187, v190, 1, v187",
                  "v_add_u32 v187, 15360, v187", "v_mov_b32 v190, 320", "v_cmp_gt_u32 vcc, v190, v184"]
            T2 += items(T) + [item(["s_nop 1", "v_cndmask_b32 v187, -1, v187, vcc"], 2)]
            T2 += glue(srd_items(srd_ws, 20, SWS, "modf", 17920) + items(["s_cmp_lt_u32 s38, 10", "s_cselect_b32 s22, s22, 0"]))
            T2 += [vitem(vm, "Fs", f"buffer_store_dwordx4 v[{FD}:{FD+3}], v{VL16}, s[20:23], s48 offen sc1"),
                   vitem(vm, "Fs", "buffer_store_dwordx2 v[188:189], v187, s[20:23], 0 offen sc1")]
            side[12]["post"] += T2
        side[1]["need"].add("P")
        if not isV:
            def s1_arrive():
                a(f"s_lshr_b32 s6, s72, 2")
                a(f"s_or_b32 s6, s6, s{S_W}")
                a("v_mov_b32 v251, s77")
                a("s_cmp_lg_u32 s6, 0")
                a("s_cbranch_scc1 Lnos1")
                a(G.arrive_text(251, VONE, SDBG))
                G.label("Lnos1")
            side[1]["code"] = s1_arrive
        Q10 = srd_items(srd_in, SRD_WQ, P("wq"), SZ["wq"])
        if OPT["prefetch"]:
            Q10 += items([f"v_min_u32 v{VPW}, 39, v{VLANE}", f"v_lshrrev_b32 v{VPC}, 1, v{VPW}", f"v_lshlrev_b32 v{VPC}, 13, v{VPC}",
                          f"v_and_b32 v{VPW}, 1, v{VPW}", f"v_lshl_add_u32 v{VPC}, v{VPW}, 7, v{VPC}",
                          f"s_lshl_b32 s{SPW}, s{S_I}, 2", f"s_add_u32 s{SPW}, s{SPW}, s{S_W}", f"s_mul_i32 s{SPW}, s{SPW}, {20*8192}",
                          f"s_lshl_b32 s7, s{S_H}, 8", f"s_add_u32 s{SPW}, s{SPW}, s7"])
            m = item(f"s_mov_b32 m0, {SPARE + 8192}")
            Q10 += [m, vitem(vm, "pf", f"buffer_load_dword v{VPC}, s[{SRD_WQ}:{SRD_WQ+3}], s{SPW} offen lds", after=m, dist=1)]
        side[7]["cold"] = Q10 + side[7]["cold"]
        if isV:
            side[10]["post"] += items([f"s_lshl_b32 s61, s{S_I}, 8", f"s_add_u32 s61, s61, {FL + 256*F_S2}", "v_mov_b32 v251, s61"])
        side[10]["post"] += qsetup_scalar()
        Q12 = []
        Q12 += items([f"s_and_b32 s61, s{S_W}, 1", "s_lshl_b32 s61, s61, 7", f"v_xor_b32 v{VWD}, s61, v{VW}",
                      f"v_add_u32 v{VWD+1}, {32768-1024}, v{VWD}",
                      f"v_and_b32 v{VH}, 3, v{VLANE}", f"v_lshlrev_b32 v{VH}, 4, v{VH}",
                      f"v_lshrrev_b32 v{VW+3}, 4, v{VLANE}", f"v_lshl_add_u32 v{VH}, v{VW+3}, 6, v{VH}",
                      f"v_bfe_u32 v{VW+3}, v{VLANE}, 2, 2", f"v_mul_u32_u24 v{VW+3}, 5120, v{VW+3}",
                      f"v_add_u32 v{VH}, v{VH}, v{VW+3}"])
        side[12]["post"] += Q12
        side[OPT.get("p2s", 12)]["cold"] += [vitem(vm, "p2", G.poll_text(VPOLL, 251, SWS), e=OPT.get("p2e", 10))]
        side[13]["need"].add("p2")
        side[13]["code"] = lambda: G.poll_check(VPOLL, 251, SWS, 64)
        NW0 = OPT.get("nw0", 12)
        wl = [w_dma(vm, k) for k in range(NW0)]
        side[13]["cold"] = wl[0] + h_load(vm, 0) + wl[1] + wl[2] + h_load(vm, 1) + wl[3]
        side[14]["cold"] = sum(wl[4:(NW0 + 4) // 2], [])
        side[15]["cold"] = sum(wl[(NW0 + 4) // 2:], [])
        for k in (13, 14, 15):
            side[k]["coldend"] = 58
        Q14 = items([f"s_lshr_b32 s7, s{S_W}, 1", "s_lshl_b32 s7, s7, 14", "s_add_u32 s7, s7, 32768"])
        Q14 += items([f"v_subrev_u32 v{VQR[db]}, s7, v{VWA[db]}" for db in range(8)])
        side[14]["post"] = Q14 + side[14]["post"]
        side[15]["need"].add(("W", 0))

        a(vm.wait({("T", 0)}))
        a("s_barrier")
        G.stamp(1)
        for n, s in enumerate(kv_reads(0, isV)):
            a(s)
            if n == 11:
                a("s_waitcnt lgkmcnt(4)")
        for ks in range(16):
            t = ks >> 1
            base = ST + 64 * (~ks & 1)
            mf = []
            for x in range(8):
                for y in range(8):
                    f, b = acc_kv(x, y, isV)
                    c = "0" if ks == 0 else R(f, b, 4)
                    mf.append([f"{MF} {R(f, b, 4)}, a[{base+4*x}:{base+4*x+3}], a[{base+32+4*y}:{base+32+4*y+3}], {c}", []])
            sd = side[ks]
            need = set(sd["need"])
            if ks & 1:
                need.add(("T", t + 1))
            a(vm.wait(need, lgkm=0))
            first = mf.pop(0)
            a(first[0])
            if ks & 1:
                a("s_barrier")
            if sd["code"]:
                sd["code"]()
            G.stamp(f"a{ks}")
            rd = items(kv_reads(ks + 1, isV) if ks < 15 else wq_reads(0), mem=1)
            spread(rd, 0, sd.get("rdend", 44))
            dm = dma_tile(vm, t + 2) if (ks & 1 and t + 2 < 8) else []
            dm = sd["pre"] + dm
            mem = dm + sd["cold"]
            def spread2(L, g0, g1):
                es = [it.get("e", 0) for it in L]
                spread(L, g0, g1)
                for it, e in zip(L, es):
                    it["e"] = e
            de = OPT.get("dmend", 36) + (14 if sd["pre"] else 0)
            spread2(dm, 0, de)
            spread2(sd["cold"], de if dm else 0, 58 if dm else sd.get("coldend", 40))
            spread2(sd["post"], 0, 58)
            over = schedule(a, mf, [rd, mem, sd["post"]])
            if over:
                print(f"  kv {'V' if isV else 'K'} step {ks}: overflow {over}")
        endq.append(list(vm.q))
        if not isV:
            a("s_branch LphB")
        allpaths.append(G.paths[0])
    G.paths = allpaths
    G.label("LphB")
    G.stamp(2)
    q0 = [t for t in endq[0] if isinstance(t, tuple) and t[0] in ("W", "H")]
    q1 = [t for t in endq[1] if isinstance(t, tuple) and t[0] in ("W", "H")]
    assert q0 == q1, (q0, q1)
    vm = VmTrack(["old"] + q0)
    PK = 128
    hq = h_load(vm, 2) + h_load(vm, 3) + h_load(vm, 4)
    for k in range(4):
        emit(a, hq.pop(0))
    a("s_nop 3")
    for k in range(16):
        for j in range(4):
            a(f"v_cvt_pk_bf16_f32 v{PK+4*k+j}, v{8*k+2*j}, v{8*k+2*j+1}")
        if k & 1:
            emit(a, hq.pop(0))
    TM = VC
    stores = []
    for k in range(16):
        d = PK + 4 * k
        A = [vitem(vm, "S", f"buffer_store_dwordx4 v[{d}:{d+3}], v{VL16}, s[28:31], s{SOUT} offen offset:{1024*(k & 3)}")]
        if k & 3 == 3:
            A.append(item(f"s_add_u32 s{SOUT}, s{SOUT}, {4096 if k < 15 else 262144 - 12288}"))
        stores.append(A)
    DFS = [("v", 240), ("v", 224), ("a", 160), ("a", 176)]

    def conv(k):
        f, b = DFS[k >> 2]
        b += 4 * (k & 3)
        B = []
        for h2 in range(2):
            d = b + 2 * h2 if f == "v" else 200 + 2 * h2
            B += [f"v_accvgpr_read_b32 v{TM+t}, a{8*k+4*h2+t}" for t in range(4)]
            B += [f"v_cvt_pk_bf16_f32 v{d}, v{TM}, v{TM+1}", f"v_cvt_pk_bf16_f32 v{d+1}, v{TM+2}, v{TM+3}"]
        if f == "a":
            B += [f"v_accvgpr_write_b32 a{b+t}, v{200+t}" for t in range(4)]
        return items(B)
    if OPT.get("nokvs") == 1:
        a("s_mov_b32 s30, 0")
    if OPT.get("nokvs") == 3:
        a(f"s_cmp_lt_u32 s{S_W}, 2")
        a("s_cselect_b32 s30, 0, s30")
    if OPT.get("nokvs") == 2:
        a(f"s_cmp_ge_u32 s{S_W}, 2")
        a("s_cselect_b32 s30, 0, s30")
    NSS = OPT.get("nss", 16)
    SARR = OPT.get("sarr", 18)
    VF3 = 221
    a(f"s_lshl_b32 s6, s{S_H}, 8")
    a(f"s_add_u32 s6, s6, {FL + 256*F_S3}")
    a(f"v_mov_b32 v{VF3}, s6")
    hfree, sdone, nrel, wnext, hnext, cnext = [], 0, 0, OPT.get("nw0", 12), 5, 0
    for ks in range(20):
        mf = []
        hf_, hb = HS[ks]
        for db in range(8):
            for g in range(4):
                d = 32 * g + 4 * db
                w = AWB[ks & 1] + 4 * db
                mf.append([f"{MF} {R('v', d, 4)}, a[{w}:{w+3}], {R(hf_, hb+4*g, 4)}, {'0' if ks == 0 else R('v', d, 4)}", []])
        need = {("H", ks)}
        if ks % 2 == 0:
            need |= {("W", ks + 1), ("W", ks + 2)}
        if ks == SARR:
            need |= {"S", "old", "xc"}
        a(vm.wait(need, lgkm=0))
        a(mf.pop(0)[0])
        if ks % 2 == 0:
            a("s_barrier")
        if ks == SARR:
            a(f"s_cmp_lg_u32 s{S_W}, 0")
            a("s_cbranch_scc1 Lnos3")
            a("s_getreg_b32 s6, hwreg(HW_REG_XCC_ID, 0, 4)")
            a("v_readfirstlane_b32 s7, v222")
            a("s_lshl_b32 s6, s6, 2")
            a("s_lshl_b32 s6, 8, s6")
            a("s_cmp_eq_u32 s6, s7")
            a("s_cselect_b32 s39, 1, 0")
            a("s_cbranch_scc1 Lsamex")
            G.label("Lwb", rec=False)
            a("buffer_wbl2 sc1")
            a("s_waitcnt vmcnt(0)")
            G.label("Lsamex")
            a(G.arrive_text(VF3, VONE, SWS))
            G.label("Lnos3")
        G.stamp(f"b{ks}")
        rd = spread(items(wq_reads(ks + 1), mem=1), 0, 18) if ks < 19 else []
        ld = []
        if ks:
            hfree.append(HS[ks - 1])
        while sdone >= 4 * (nrel + 1):
            hfree.append(("v", PK + 16 * nrel))
            nrel += 1
        if wnext <= min(19, ks + OPT.get("wl", 8)):
            ld += w_dma(vm, wnext)
            wnext += 1
        if hnext <= 19:
            if hnext not in HS:
                hfree.sort(key=lambda x: -DFS.index(x) if x in DFS else -10)
                HS[hnext] = hfree.pop(0)
            ld += h_load(vm, hnext)
            hnext += 1
        cv = []
        while cnext < 16 and len(cv) < 20 and (DFS[cnext >> 2] in hfree or cnext & 3):
            if cnext & 3 == 0:
                hfree.remove(DFS[cnext >> 2])
            cv += conv(cnext)
            cnext += 1
        spread(cv, 0, 29)
        if ks == 4:
            ld.append(vitem(vm, "xc", f"global_load_dword v222, v{VF3}, s[{SWS}:{SWS+1}] offset:4 sc1"))
        spread(ld, 0, 26)
        st = []
        k0 = ks - OPT.get("ss0", 0)
        for k in range((16 * k0) // NSS, min(16, (16 * (k0 + 1)) // NSS)) if k0 >= 0 else []:
            st += stores[k]
            sdone += 1
        spread(st, 0, 28)
        over = schedule(a, mf, [rd, ld, st, cv])
        if over:
            print(f"  qproj step {ks}: overflow {over}")
    assert cnext == 16 and wnext == 20, (cnext, wnext)
    G.stamp(3)
    a(G.poll_text(VT, VF3, SWS))
    a(f"s_mul_i32 s6, s{S_H}, {HSTR}")
    a(f"s_add_u32 s7, s6, {WS['kf'][0]}")
    a(f"s_add_u32 s{SRD_K}, s{SWS}, s7")
    a(f"s_addc_u32 s{SRD_K+1}, s{SWS+1}, 0")
    a(f"s_and_b32 s{SRD_K+1}, s{SRD_K+1}, 0xffff")
    a(f"s_sub_u32 s7, 16, s{S_I}")
    a(f"s_lshl_b32 s{SRD_K+2}, s7, 15")
    a(f"s_mov_b32 s{SRD_K+3}, 0x20000")
    a(f"s_add_u32 s7, s6, {WS['vf'][0] - 32768}")
    a(f"s_add_u32 s{SRD_V}, s{SWS}, s7")
    a(f"s_addc_u32 s{SRD_V+1}, s{SWS+1}, 0")
    a(f"s_and_b32 s{SRD_V+1}, s{SRD_V+1}, 0xffff")
    a(f"s_add_u32 s{SRD_V+2}, s{SRD_K+2}, 32768")
    a(f"s_mov_b32 s{SRD_V+3}, 0x20000")
    a(f"s_lshl_b32 s{S_OFF}, s{S_W}, 12")
    a(f"s_mov_b32 s{S_MASK}, 0xffff")
    bits = lambda L: sum(1 << (31 - d) for d in L)
    RP0 = 4
    a(f"s_mov_b32 s{S_EV}, {hex(bits([2, 6, 7]))}")
    a(f"s_cmp_ge_u32 s{S_I}, {RP0}")
    a(f"s_cselect_b32 s{S_EV}, {hex(bits([2, 6, 7, 8]))}, s{S_EV}")
    a(f"s_mov_b32 s{S_EC}, 0")
    sites = []

    def hook(name):
        sites.append(name)
        return (f"Lh_{name}", lambda: G.label(f"Lr_{name}"))
    for g in range(4):
        for db in range(8):
            d = 32 * g + 4 * db
            q = Q0 + 16 * g + 4 * (db >> 1) + 2 * (db & 1)
            a(f"v_cvt_pk_bf16_f32 v{q}, v{d}, v{d+1}")
            a(f"v_cvt_pk_bf16_f32 v{q+1}, v{d+2}, v{d+3}")
    a("s_waitcnt vmcnt(0)")
    G.poll_check(VT, VF3, SWS, 8)
    G.stamp(4)
    flat(a, dma_items(k=True, v=False))
    dq = dma_items(k=True, v=False) + dma_items()
    real_a, t_ = a, Asm()
    a = t_
    a = real_a
    a(f"s_sub_u32 s38, s2, {32*RP0}")
    a("s_lshl_b32 s38, s38, 2")
    a(f"s_add_u32 s38, s38, s{S_W}")
    a("s_cmp_lt_u32 s38, 364")
    a("s_cbranch_scc1 Lrp_a")
    G.label("Lrp_w1")
    srd_in(a, 16, P("w1"), SZ["w1"])
    srd_ws(a, 24, SWS, "w1f")
    a("s_cmp_lt_u32 s38, 472")
    a("s_cselect_b32 s18, s18, 0")
    a("s_cselect_b32 s26, s26, 0")
    a("s_sub_u32 s6, s38, 364")
    a("s_and_b32 s7, s6, 3")
    a("s_lshr_b32 s6, s6, 2")
    a(f"s_mul_i32 s44, s7, {5*32*3456}")
    a("s_lshl_b32 s45, s6, 7")
    a("s_add_u32 s44, s44, s45")
    a(f"s_mul_i32 s100, s6, {4*20480}")
    a("s_mul_i32 s7, s7, 5120")
    a("s_add_u32 s100, s100, s7")
    a(f"s_mov_b32 s45, {32*3456}")
    a("s_mov_b32 s101, 1024")
    a("s_mov_b32 s42, 3456")
    a("s_mov_b32 s43, 20480")
    a("s_branch Lrp_c")
    G.label("Lrp_a", rec=False)
    srd_in(a, 16, P("wo"), SZ["wo"])
    srd_ws(a, 24, SWS, "wof")
    a(f"s_mov_b32 s43, {WSTR}")
    a("s_mov_b32 s6, s38")
    a("s_cmp_lt_u32 s38, 256")
    a("s_cbranch_scc1 Lrp_b")
    srd_in(a, 16, P("w2"), SZ["w2"])
    srd_ws(a, 24, SWS, "w2f")
    a("s_mov_b32 s43, 55296")
    a("s_sub_u32 s6, s38, 256")
    G.label("Lrp_b", rec=False)
    a("s_and_b32 s7, s6, 1")
    a("s_lshr_b32 s6, s6, 1")
    a(f"s_mul_i32 s44, s6, {32*1280}")
    a("s_mul_i32 s45, s7, 640")
    a("s_add_u32 s44, s44, s45")
    a("s_lshl_b32 s101, s43, 2")
    a("s_mul_i32 s100, s7, s101")
    a("s_mul_i32 s100, s100, 5")
    a("s_lshl_b32 s6, s6, 10")
    a("s_add_u32 s100, s100, s6")
    a("s_mov_b32 s45, 128")
    a("s_mov_b32 s42, 1280")
    G.label("Lrp_c")
    if OPT.get("norp"):
        a("s_mov_b32 s18, 0")
    a("s_mov_b32 s49, s26")
    a("s_mov_b32 s26, 0")
    a("s_mov_b32 s38, 0")
    a(f"s_lshl_b32 s60, s{S_W}, 13")
    a(f"s_add_u32 s60, s60, {SPARE}")
    a = t_
    a(f"v_mov_b32 v{VK}, v{VL16}")
    a(f"v_add_u32 v{VV}, {65536 + 3*16384}, v{VL16}")
    a(f"v_and_b32 v2, 15, v{VLANE}")
    a(f"s_lshl_b32 s6, s{S_W}, 4")
    a("v_add_u32 v2, s6, v2")
    a(f"v_lshrrev_b32 v3, 4, v{VLANE}")
    a("v_lshlrev_b32 v3, 2, v3")
    a("v_sub_u32 v2, v2, v3")
    a(f"v_mov_b32 v4, {hex(f32bits(-BIG))}")
    zi = list(range(AO, AO + 144))
    for kb in range(4):
        for t in range(4):
            a(f"v_cmp_gt_i32 vcc, {16*kb + t}, v2")
            a(f"v_accvgpr_write_b32 a{zi.pop()}, 0")
            a(f"v_accvgpr_write_b32 a{zi.pop()}, 0")
            a(f"v_cndmask_b32 v{BIAS + 4*kb + t}, 0, v4, vcc")
    for r in zi:
        a(f"v_accvgpr_write_b32 a{r}, 0")
    a(f"v_mov_b32 v{VT}, 0x3f803f80")
    for r in range(4):
        a(f"v_accvgpr_write_b32 a{AONE + r}, v{VT}")
    a(f"s_cmp_eq_u32 s{S_I}, 0")
    a(f"s_cselect_b32 s{S_Z}, 1.0, 0")
    a = real_a
    todo = [l.strip() for l in t_.lines]
    per = len(todo) // (len(dq) + 1)
    for n, l in enumerate(todo):
        a(l)
        if dq and n % per == per - 1 and not l.startswith("s_cmp"):
            emit(a, dq.pop(0))
    assert not dq
    G.stamp("q0")
    a("s_waitcnt vmcnt(12)")
    a("s_barrier")
    G.stamp("q1")
    for n, g2 in enumerate(kgroups(1, 0)):
        a(group_reads(g2, 4 * n)[1])
    G4, G3, G2 = [0, 1, 2, 3], [1, 2, 3], [2, 3]
    pos = iteration(a, 1, 0, qk=dict(typ=1, gs=G4, groups=kgroups(1, 0), mask=(0, 0, True), czero=True),
                    nxt=kgroups(1, 1), name="pro0", first_wait=True, dma=dma_items())
    LSC = " sc1" if OPT.get("lsc1") else ""

    def dstore(k):
        f, b = DFS[k >> 2]
        L = [item(f"buffer_store_dwordx4 {R(f, b + 4*(k & 3), 4)}, v{VL16}, s[28:31], s{SOUT} offen offset:{1024*(k & 3)}{LSC}", 2, mem=1)]
        if k & 3 == 3:
            L.append(item(f"s_add_u32 s{SOUT}, s{SOUT}, 4096"))
        return L
    t_ = Asm()
    for g in (1, 2, 3, 0):
        b0, b1, m = S0 + 4 * g, S0 + 16 + 4 * g, ET + g
        t_(f"v_max3_f32 v{m}, v{b0}, v{b0+1}, v{b0+2}")
        t_(f"v_max3_f32 v{m}, v{m}, v{b0+3}, v{b1}")
        t_(f"v_max3_f32 v{m}, v{m}, v{b1+1}, v{b1+2}")
        t_(f"v_max_f32 v{m}, v{m}, v{b1+3}")
    t_(quad_red("v_max_f32", [ET, ET + 1, ET + 2, ET + 3], ET + 4))
    for g in range(4):
        for t in range(4):
            t_(f"v_sub_f32 v{NEGM+4*g+t}, 0, v{ET+g}")
    for g in range(4):
        for kb in range(2):
            for t in range(4):
                r = S0 + 16 * kb + 4 * g + t
                t_(f"v_sub_f32 v{r}, v{r}, v{ET+g}")
    flat(a, dstore(0))
    a("s_nop 3")
    k = 1
    for n, l in enumerate(t_.lines):
        a(l.strip())
        if n % 12 == 11 and k < 8:
            flat(a, dstore(k))
            k += 1
    assert k == 8
    RA, RT, RV, RO, RD = 240, 241, 242, 246, 160
    rsu = [f"v_lshrrev_b32 v{RT}, 2, v{VLANE}", f"v_lshlrev_b32 v{RA}, 7, v{RT}", f"v_bfe_u32 v{RT}, v{VLANE}, 3, 2",
           f"v_lshl_add_u32 v{RA}, v{RT}, 5, v{RA}", f"v_and_b32 v{RT}, 3, v{VLANE}", f"v_lshl_add_u32 v{RA}, v{RT}, 3, v{RA}",
           f"v_add_u32 v{RA}, s60, v{RA}",
           f"v_bfe_u32 v{RV}, v{VLANE}, 1, 2", f"v_lshrrev_b32 v{RT}, 4, v{VLANE}", f"v_xor_b32 v{RV}, v{RV}, v{RT}",
           f"v_lshlrev_b32 v{RV}, 5, v{RV}", f"v_and_b32 v{RT}, 1, v{VLANE}", f"v_lshl_add_u32 v{RV}, v{RT}, 4, v{RV}",
           f"v_lshrrev_b32 v{RT}, 3, v{VLANE}", f"v_mad_u32_u24 v{RV}, v{RT}, s42, v{RV}",
           "s_lshl_b32 s42, s42, 3", "s_sub_u32 s42, s42, 1024"]
    rsu += [f"v_add_u32 v{RV+j}, s42, v{RV+j-1}" for j in range(1, 4)]
    rsu += [f"v_mov_b32 v{RO}, v{VL16}"] + [f"v_add_u32 v{RO+j}, s43, v{RO+j-1}" for j in range(1, 4)]
    ds2 = spread(sum([dstore(k) for k in range(8, 16)], []), 3, 31)
    for it in ds2:
        it["e"] = it["t"]
    pos = iteration(a, 0, pos, qk=dict(typ=1, gs=G4, groups=kgroups(1, 1), mask=(0, 2, True)),
                    sm=dict(typ=1, gs=G4), nxt=kgroups(1, 0, adv="exact"), bar=16, dma=dma_items(), name="pro1",
                    hook=hook("pro1"), xs=[ds2, spread(items(rsu), 1, 30)])
    assert pos == 0
    G.stamp("p1")
    a(f"s_cmp_eq_u32 s{S_I}, 7")
    a(f"s_cselect_b32 s{S_Z}, 1.0, 0")
    a(f"s_lshl_b32 s{S_CNT}, s{S_I}, 1")
    a(f"s_sub_u32 s{S_CNT}, s{S_CNT}, 1")
    a(f"s_cmp_eq_u32 s{S_I}, 0")
    a("s_cbranch_scc1 LmaskB")

    def body1(qa, qb, sma, smb, pva, pvb, nxtb, name, extra=(), xa=(), xb=(), bar=8):
        p = iteration(a, 1, 0, qk=dict(typ=1, groups=kgroups(1, 0), **qa), sm=dict(typ=1, gs=sma),
                      pv=dict(typ=1, gs=pva, groups=vgroups(1, 0, adv="exact")), nxt=kgroups(1, 1), name=name + "a",
                      extra=extra, xs=xa)
        p = iteration(a, 0, p, qk=dict(typ=1, groups=kgroups(1, 1), **qb), sm=dict(typ=1, gs=smb),
                      pv=dict(typ=1, gs=pvb, groups=vgroups(1, 1)), nxt=nxtb, bar=bar, xs=xb, dma=dma_items(), name=name + "b",
                      hook=hook(name))
        return p
    pA, pB = G.paths
    G.paths = [pA]
    a(".p2align 4")
    G.label("Lloop1")
    xa = [item(f"s_sub_u32 s{S_CNT}, s{S_CNT}, 1"), item("s_add_u32 s38, s38, 1"), item("s_sub_u32 s6, s38, 3"),
          item(["s_cmp_lt_u32 s6, 5", "s_cselect_b32 s26, s49, 0"], 1, lead=1),
          item(["s_cmp_lt_u32 s6, 5", "s_cselect_b32 s7, s101, 0"], 1, lead=1)]
    xa += [item(f"buffer_store_dwordx4 a[{RD+4*j}:{RD+4*j+3}], v{RO+j}, s[24:27], s100 offen sc1", 2, mem=1) for j in range(4)]
    m = item("s_mov_b32 m0, s60")
    xa += [item("s_add_u32 s100, s100, s7"), item(["s_cmp_lt_u32 s38, 6", "s_cselect_b32 s18, s18, 0"], 1, lead=1), m]
    xa += [item(f"buffer_load_dwordx4 v{RV+j}, s[16:19], s44 offen offset:{1024*j} lds", 2, mem=1) for j in range(4)]
    xa[-4]["after"], xa[-4]["dist"] = m, 1
    xa += [item("s_add_u32 s44, s44, s45"), item("s_xor_b32 s60, s60, 4096")]
    k = 0
    for it in xa:
        it["e"] = it["t"] = 6 + 7 * k if it.get("mem") else 0
        it["t"] -= 100
        k += bool(it.get("mem"))
    xb = [item(f"v_xor_b32 v{RA}, 4096, v{RA}")]
    for j in range(4):
        xb += [item(f"v_xor_b32 v{RT}, {32*j}, v{RA}"),
               item(f"ds_read_b64_tr_b16 a[{RD+4*j}:{RD+4*j+1}], v{RT}"),
               item(f"ds_read_b64_tr_b16 a[{RD+4*j+2}:{RD+4*j+3}], v{RT} offset:2048")]
    for it in xb:
        it["e"], it["t"] = 52, -30
    body1(dict(gs=G4), dict(gs=G4), G4, G4, G4, G4, kgroups(1, 0, adv="exact"), "loop1", xa=[xa], xb=[xb], bar=16)
    a(f"s_cmp_lg_u32 s{S_CNT}, 0")
    a("s_cbranch_scc1 Lloop1")
    pA += ["Lloop1", "Lr_loop1"]
    G.label("LmaskA")
    G.stamp("mA")
    body1(dict(gs=G4, mask=(0, 0, False)), dict(gs=G4, mask=(0, 2, False)), G4, G4, G4, G4,
          kgroups(1, 0, adv="exact"), "maskA")
    G.paths = [pA, pB]
    G.label("LmaskB")
    G.stamp("mB")
    body1(dict(gs=G3, mask=(1, 0, False)), dict(gs=G3, mask=(1, 2, False)), G4, G3, G4, G4,
          kgroups(2, adv="exact")[:2], "maskB")
    U = 16384
    p = iteration(a, 1, 0, qk=dict(typ=2, gs=G2, groups=kgroups(2), mask=(2, 0, True)), sm=dict(typ=1, gs=G3),
                  pv=dict(typ=1, gs=G3, groups=vgroups(1, 0, up=U)), nxt=kgroups(2, up=U)[:2], name="trans",
                  extra=items([f"s_lshl_b32 s{S_CNT}, s{S_I}, 1", f"s_sub_u32 s{S_CNT}, 13, s{S_CNT}"]))
    assert p == 8
    G.stamp("x1")
    a(f"s_cmp_eq_u32 s{S_I}, 7")
    a("s_cbranch_scc1 LX2")
    G.paths = [pA]
    G.label("LX1")
    p = iteration(a, 0, 8, qk=dict(typ=2, gs=G2, groups=kgroups(2, up=U)), sm=dict(typ=2, gs=G2),
                  pv=dict(typ=1, gs=G3, groups=vgroups(1, 1, up=U)), nxt=kgroups(2, adv="xor")[:2], bar=8,
                  dma=dma_items(), name="X1", hook=hook("X1"))
    assert p == 0
    G.stamp("l2")
    a(".p2align 4")
    G.label("Lloop2")
    iteration(a, 1, 0, qk=dict(typ=2, gs=G2, groups=kgroups(2)), sm=dict(typ=2, gs=G2),
              pv=dict(typ=2, gs=G2, groups=vgroups(2, adv="xor")), nxt=kgroups(2, up=U)[:2], bar=8,
              dma=dma_items(), name="loop2a", hook=hook("loop2a"), extra=[item(f"s_sub_u32 s{S_CNT}, s{S_CNT}, 1")])
    iteration(a, 0, 0, qk=dict(typ=2, gs=G2, groups=kgroups(2, up=U)), sm=dict(typ=2, gs=G2),
              pv=dict(typ=2, gs=G2, groups=vgroups(2, up=U)), nxt=kgroups(2, adv="xor")[:2], bar=8,
              dma=dma_items(), name="loop2b", hook=hook("loop2b"))
    a(f"s_cmp_lg_u32 s{S_CNT}, 0")
    a("s_cbranch_scc1 Lloop2")
    pA += ["Lloop2", "Lr_loop2a", "Lr_loop2b"]
    G.label("LtailA")
    G.stamp("tA")
    iteration(a, 1, 0, qk=dict(typ=2, gs=G2, groups=kgroups(2), mask=(2, 0, False)), sm=dict(typ=2, gs=G2),
              pv=dict(typ=2, gs=G2, groups=vgroups(2, adv="xor")), nxt=kgroups(2, up=U)[:2], bar=8,
              dma=dma_items(k=False), name="tailA1")
    iteration(a, 0, 0, qk=dict(typ=2, gs=[3], groups=kgroups(2, up=U), mask=(3, 0, False)), sm=dict(typ=2, gs=G2),
              pv=dict(typ=2, gs=G2, groups=vgroups(2, up=U)), nxt=vgroups(2, adv="xor")[:2], bar=4, name="tailA2")
    a("s_branch LtailB")
    G.paths = [pB]
    G.label("LX2")
    p = iteration(a, 0, 8, qk=dict(typ=2, gs=[3], groups=kgroups(2, up=U), mask=(3, 0, False)), sm=dict(typ=2, gs=G2),
                  pv=dict(typ=1, gs=G3, groups=vgroups(1, 1, up=U)), nxt=vgroups(2, adv="xor")[:2], bar=8, name="X2")
    assert p == 0
    G.paths = [pA, pB]
    G.label("LtailB")
    G.stamp("tB")
    VPA = 222
    ex = items([f"v_and_b32 v{VF3}, 31, v{VLANE}", f"v_lshlrev_b32 v{VF3}, 8, v{VF3}",
                f"v_add_u32 v{VF3}, {FL + 256*F_S3 + 12}, v{VF3}"]) + [item(G.poll_text(VPA, VF3, SWS), 2)]
    import mega_tail
    su = glue(srd_items(mega_tail.t1_setup))
    n1 = OPT.get("su1", 12)
    iteration(a, 1, 0, sm=dict(typ=2, gs=[3]), pv=dict(typ=2, gs=G2, groups=vgroups(2)),
              nxt=vgroups(2, up=U)[:2], bar=0, name="tailB1", extra=ex + su[:n1])
    a("s_nop 1")
    iteration(a, 0, 0, pv=dict(typ=2, gs=[3], groups=vgroups(2, up=U)), name="tailB2", extra=su[n1:])
    G.stamp(5)
    a("s_barrier")
    a(f"s_mov_b32 s7, {hex(f32bits(2.0**64))}")
    a("s_waitcnt vmcnt(0)")
    G.poll_check(VPA, VF3, SWS, S3ALL)
    a("s_nop 2")
    for g in range(4):
        a(f"v_accvgpr_read_b32 v{ET+g}, a{AL+4*g}")
    a(f"v_cmp_ngt_f32 vcc, s7, v{ET}")
    for g in range(1, 4):
        a(f"v_cmp_ngt_f32 s[48:49], s7, v{ET+g}")
        a("s_nop 0")
        a("s_or_b64 vcc, vcc, s[48:49]")
    a("s_cmp_lg_u64 vcc, 0")
    a("s_cbranch_scc1 Lslow")
    pB += ["Lslow", "Lslowl", "Lslowl"]
    G.label("Lepi")
    mega_tail.tail(G, SBLK)
    G.paths = []
    for nm in sites:
        G.label(f"Lh_{nm}")
        a(f"s_call_b64 s[{S_RET}:{S_RET+1}], Lhook")
        a(f"s_branch Lr_{nm}")
    G.label("Lhook")
    NEV = 4
    a(f"s_add_u32 s{S_EC}, s{S_EC}, 1")
    for e in range(1, NEV):
        a(f"s_cmp_eq_u32 s{S_EC}, {e + 1}")
        a(f"s_cbranch_scc1 Lev{e}")
    ret = f"s_setpc_b64 s[{S_RET}:{S_RET+1}]"
    evp = []

    def ev(e):
        G.paths = [[]]
        evp.append(G.paths[0])
        G.label(f"Lev{e}")
        G.stamp(f"ev{e}")

    def arrive_off(off):
        a("s_mov_b64 exec, 1")
        a(f"global_atomic_add v{VF3}, v{VONE}, s[{SWS}:{SWS+1}] offset:{off} sc1")
        a("s_mov_b64 exec, -1")
    ev(0)
    a(f"s_cmp_lg_u32 s{S_W}, 0")
    a("s_cbranch_scc1 Lev3b")
    a("s_cmp_eq_u32 s39, 1")
    a("s_cbranch_scc1 Lev0a")
    a("buffer_wbl2 sc1")
    a("s_waitcnt vmcnt(0)")
    G.label("Lev0a")
    arrive_off(8)
    a(f"s_cmp_lt_u32 s{S_I}, {RP0}")
    a("s_cbranch_scc1 Lev3a")
    a(ret)
    ev(1)
    a(f"v_add_u32 v224, 8, v{VF3}")
    a(G.poll_text(225, 224, SWS))
    a(ret)
    ev(2)
    G.poll_check(225, 224, SWS, 8)
    a(ret)
    ev(3)
    a(f"s_cmp_lg_u32 s{S_W}, 0")
    a("s_cbranch_scc1 Lev3b")
    G.label("Lev3a")
    arrive_off(12)
    G.label("Lev3b")
    a(ret)
    G.paths = []
    G.label("Lslow")
    M = NEGM
    for r in range(AO, AO + 144):
        a(f"v_accvgpr_write_b32 a{r}, 0")
    a(f"v_and_b32 v{VT}, 15, v{VLANE}")
    for g in range(4):
        a(f"v_mov_b32 v{M+g}, {hex(f32bits(-BIG))}")
        a(f"s_lshl_b32 s6, s{SBLK+g}, 4")
        a(f"v_add_u32 v{M+4+g}, s6, v{VT}")
    a(f"v_lshrrev_b32 v{M+8}, 4, v{VLANE}")
    a(f"v_lshlrev_b32 v{M+8}, 2, v{M+8}")
    a(f"v_mov_b32 v{M+9}, {hex(f32bits(-BIG))}")
    a(f"s_mov_b32 s{S_OFF}, 0")
    G.label("Lslowl")
    for k in range(8):
        a(f"s_add_u32 s6, s{S_OFF}, {1024*k}")
        a(f"buffer_load_dwordx4 a[{ARING+4*k}:{ARING+4*k+3}], v{VL16}, s[{SRD_K}:{SRD_K+3}], s6 offen")
        a(f"s_add_u32 s6, s{S_OFF}, {32768 + 1024*k}")
        a(f"buffer_load_dwordx4 a[{ARING+32+4*k}:{ARING+32+4*k+3}], v{VL16}, s[{SRD_V}:{SRD_V+3}], s6 offen")
    a("s_waitcnt vmcnt(0)")
    for kb in range(2):
        for g in range(4):
            d = S0 + 16 * kb + 4 * g
            for sg in range(4):
                r = ARING + 16 * kb + 4 * sg
                q = Q0 + 16 * g + 4 * sg
                a(f"{MF} {R('v', d, 4)}, a[{r}:{r+3}], v[{q}:{q+3}], {'0' if sg == 0 else R('v', d, 4)}")
    a("s_nop 7")
    for g in range(4):
        a(f"v_sub_u32 v{VT}, v{M+4+g}, v{M+8}")
        for kb in range(2):
            for t in range(4):
                r = S0 + 16 * kb + 4 * g + t
                a(f"v_cmp_gt_i32 vcc, {16*kb + t}, v{VT}")
                a("s_nop 1")
                a(f"v_cndmask_b32 v{r}, v{r}, v{M+9}, vcc")
        b0, b1, m = S0 + 4 * g, S0 + 16 + 4 * g, ET + g
        a(f"v_max3_f32 v{m}, v{b0}, v{b0+1}, v{b0+2}")
        a(f"v_max3_f32 v{m}, v{m}, v{b0+3}, v{b1}")
        a(f"v_max3_f32 v{m}, v{m}, v{b1+1}, v{b1+2}")
        a(f"v_max3_f32 v{m}, v{m}, v{b1+3}, v{M+g}")
    a(quad_red("v_max_f32", [ET, ET + 1, ET + 2, ET + 3], ET + 4))
    for g in range(4):
        a(f"v_sub_f32 v{ET+4+g}, v{M+g}, v{ET+g}")
        a(f"v_mov_b32 v{M+g}, v{ET+g}")
        a(f"v_exp_f32 v{ET+4+g}, v{ET+4+g}")
    for g in range(4):
        regs = [AO + 32 * g + k for k in range(32)] + [AL + 4 * g + k for k in range(4)]
        for r in regs:
            a(f"v_accvgpr_read_b32 v{VT}, a{r}")
            a(f"v_mul_f32 v{VT}, v{ET+4+g}, v{VT}")
            a(f"v_accvgpr_write_b32 a{r}, v{VT}")
        for kb in range(2):
            for t in range(4):
                r = S0 + 16 * kb + 4 * g + t
                a(f"v_sub_f32 v{r}, v{r}, v{M+g}")
            for t in range(4):
                r = S0 + 16 * kb + 4 * g + t
                a(f"v_exp_f32 v{r}, v{r}")
            a("s_nop 0")
            r = S0 + 16 * kb + 4 * g
            a(f"v_cvt_pk_bf16_f32 v{P0+4*g+2*kb}, v{r}, v{r+1}")
            a(f"v_cvt_pk_bf16_f32 v{P0+4*g+2*kb+1}, v{r+2}, v{r+3}")
    a("s_nop 1")
    for db in range(8):
        r = ARING + 32 + 4 * db
        for g in range(4):
            o = AO + 32 * g + 4 * db
            a(f"{MF} {R('a', o, 4)}, a[{r}:{r+3}], {R('v', P0+4*g, 4)}, {R('a', o, 4)}")
    for g in range(4):
        a(f"{MF} {R('a', AL+4*g, 4)}, {R('a', AONE, 4)}, {R('v', P0+4*g, 4)}, {R('a', AL+4*g, 4)}")
    a(f"v_add_u32 v{M+8}, 32, v{M+8}")
    a(f"s_add_u32 s{S_OFF}, s{S_OFF}, 8192")
    a(f"s_cmp_lt_u32 s{S_OFF}, s{SRD_K+2}")
    a("s_nop 7")
    a("s_cbranch_scc1 Lslowl")
    a("s_branch Lepi")
    G.label("Lend")
    a("s_endpgm")
    kernel_desc(a, NAME, vgpr=512, accum=256)
    errs = []
    for p in [pA, pB] + evp:
        errs += a.check(p)
    return errs


if __name__ == "__main__":
    import sys
    out = sys.argv[1] if len(sys.argv) > 1 else "m.s"
    HEADER = open("adaLN_cond__compressed_kv_cla__dense_activation_squared_relu__prompt.s.ref").read().split("; Override launch")[0]
    G = Gen()
    errs = gen(G)
    for e in errs[:40]:
        print("CHECK:", e)
    txt = HEADER + "; @launch grid=(256,1,1) block=(256,1,1) lds=163840\n"
    txt += '.amdgcn_target "amdgcn-amd-amdhsa--gfx950"\n'
    txt += "\n".join(l.strip() if l.startswith("    ") else l for l in G.a.lines) + "\n"
    open(out, "w").write(txt)
    print("wrote", out, len(txt), "bytes", f"{len(errs)} ERRORS" if errs else "")
```

```python
class VmTrack:
    def __init__(self, q=None):
        self.q = list(q or [])

    def issue(self, tag):
        self.q.append(tag)

    def count(self, tags):
        last = max((n for n, t in enumerate(self.q) if t in tags), default=-1)
        if last < 0:
            return None
        n = len(self.q) - 1 - last
        self.q = self.q[last + 1:]
        assert n <= 63, n
        return n

    def wait(self, tags, lgkm=None):
        n = self.count(tags)
        parts = []
        if n is not None:
            parts.append(f"vmcnt({n})")
        if lgkm is not None:
            parts.append(f"lgkmcnt({lgkm})")
        return "s_waitcnt " + " ".join(parts) if parts else []


def item(s, c=1, **kw):
    d = dict(s=s, c=c)
    d.update(kw)
    return d


def vitem(vm, tag, s, **kw):
    return item(s, 2, mem=1, cb=(lambda: vm.issue(tag)), **kw)


def emit(a, it):
    if it.get("cb"):
        it["cb"]()
    s = it["s"]
    if callable(s):
        s = s()
    a(s)
    if it.get("then"):
        it["then"]()


def flat(a, L):
    prev = None
    for it in L:
        if prev is not None and it.get("after") is prev and it.get("dist", 1) >= 1:
            a(f"s_nop {it.get('nop', 0)}")
        emit(a, it)
        prev = it


def spread(L, g0, g1):
    tot = sum(i["c"] for i in L) or 1
    acc = 0
    for it in L:
        it["t"] = g0 + (acc * (g1 - g0)) // tot
        it.setdefault("e", g0)
        acc += it["c"]
    return L


def is_scalar(it):
    s = it["s"]
    return isinstance(s, str) and s.startswith("s_") and not s.startswith("s_barrier")


def is_vmem(it):
    s = it["s"]
    return isinstance(s, str) and s.startswith(("buffer_", "global_"))


def rd_w(it):
    s = it["s"]
    if isinstance(s, str) and s.startswith("ds_read_b128"):
        return 2
    if isinstance(s, str) and s.startswith("ds_"):
        return 1
    return 0


def schedule(a, mfmas, streams, base=2, prev_rd=0):
    n = len(mfmas)
    streams = [s for s in streams if s]
    total = sum(i["c"] for s in streams for i in s if not is_scalar(i))
    nsc = sum(1 for s in streams for i in s if is_scalar(i))
    nvm = sum(1 for s in streams for i in s if is_vmem(i))
    total += max(0, nsc - max(0, n - nvm) // 2)
    while total > base * n:
        base += 1
    over_full = base > 2
    sc_extra = max(0, nsc - max(0, n - nvm) // 2)
    acc_b = 0.0
    if base > 2:
        print(f"    (schedule: {total} slots for {n} gaps)")
    idx = [0] * len(streams)
    left = sum(i["c"] for s in streams for i in s if not is_scalar(i))
    state = dict(rd=0, prev=prev_rd, novm=False)

    def heads(g, budget):
        out = []
        for si, s in enumerate(streams):
            if idx[si] >= len(s):
                continue
            it = s[idx[si]]
            if it.get("e", 0) > g or it["c"] > budget:
                continue
            af = it.get("after")
            if af is not None and (af.get("g") is None or g < af["g"] + it.get("dist", 1)):
                continue
            w = rd_w(it)
            if w and base == 2 and state["rd"] + state["prev"] + w > 4:
                if not (it.get("d") is not None and it["d"] <= g + it.get("rem", 0) // 2):
                    continue
            if state["novm"] and base == 2 and is_vmem(it):
                continue
            out.append((it.get("t", 0), si, it))
        out.sort(key=lambda x: (x[0], x[1]))
        return out

    for g, (m, prei) in enumerate(mfmas):
        for p in prei:
            a(p() if callable(p) else p)
        a(m)
        if over_full:
            acc_b += (left + sc_extra * (n - g) / n) / (n - g)
            base = max(2, int(acc_b + 0.999))
            acc_b = min(0, acc_b - base) if base > 2 else 0
        budget = base
        chosen = []
        state["prev"], state["rd"], state["novm"] = state["rd"], 0, False

        def take(si, it, free=False):
            nonlocal budget, left
            it["g"] = g
            idx[si] += 1
            if not free:
                budget -= it["c"]
            if not is_scalar(it):
                left -= it["c"]
            state["rd"] += rd_w(it)
            chosen.append((si, it))
        h = heads(g, budget)
        sc = [x for x in h if is_scalar(x[2])]
        first = None
        lead = [x for x in h if x[2].get("lead")]
        if lead and sc and sc[0][2].get("d") is not None and sc[0][2]["d"] <= g:
            lead = []
        if lead:
            take(lead[0][1], lead[0][2])
            first = chosen.pop()
            state["novm"] = True
            sc = []
        if sc:
            due = [x for x in h if x[0] <= g]
            must = sc[0][2].get("d") is not None and sc[0][2]["d"] <= g
            if must or not (due and is_vmem(due[0][2])):
                take(sc[0][1], sc[0][2], free=True)
                first = chosen.pop()
                state["novm"] = True
        while True:
            h = heads(g, budget)
            z = [x for x in h if x[2]["c"] == 0 and x[0] <= g]
            if z:
                take(z[0][1], z[0][2])
                continue
            h = [x for x in h if x[2]["c"] > 0 and not x[2].get("lead")]
            tight = left >= base * (n - g) - 3
            if tight:
                h = [x for x in h if not is_scalar(x[2]) or (x[2].get("d") is not None and x[2]["d"] <= g) or budget % 2 == 1]
            if not h:
                break
            due = [x for x in h if x[0] <= g]
            if budget % 2 == 1 or budget < 2:
                c1 = [x for x in h if x[2]["c"] == 1]
                c1.sort(key=lambda x: (is_scalar(x[2]), rd_w(x[2]) > 0 and state["rd"] > 0 and not x[2].get("urg"), x[0]))
                if c1:
                    take(c1[0][1], c1[0][2])
                    continue
                if budget < 2:
                    break
            cand = due if due else (h if tight else [])
            if not cand:
                break
            t0, si, it = cand[0]
            if it["c"] == 1:
                idx[si] += 1
                it["g"] = g
                state["rd"] += rd_w(it)
                partner = [x for x in heads(g, budget - 1) if x[2]["c"] == 1 and not x[2].get("lead")]
                state["rd"] -= rd_w(it)
                idx[si] -= 1
                it["g"] = None
                c2 = [x for x in (h if tight else due) if x[2]["c"] == 2]
                urgent = it.get("d") is not None and it["d"] <= g + 1 + it.get("rem", 0)
                if not partner and c2 and not urgent:
                    t0, si, it = c2[0]
            take(si, it)
        front, rest = [], []
        for si, it in chosen:
            if it.get("mem") and not any(sj == si or it.get("after") is jt for sj, jt in rest):
                front.append((si, it))
            else:
                rest.append((si, it))
        for si, it in ([first] if first else []) + front + rest:
            emit(a, it)
    over = 0
    more = True
    while more:
        more = False
        for si, s in enumerate(streams):
            while idx[si] < len(s):
                it = s[idx[si]]
                af = it.get("after")
                if af is not None and af.get("g") is None:
                    more = True
                    break
                if af is not None and it.get("dist", 1) >= 1 and af["g"] + it.get("dist", 1) > n - 1:
                    a(f"s_nop {it.get('nop', 0)}")
                it["g"] = n
                idx[si] += 1
                over += it["c"]
                emit(a, it)
    for s in streams:
        for it in s:
            if it.get("d") is not None:
                assert it["g"] <= it["d"], ("deadline missed", it, n)
    return over
```

```python
import os
from common import *
from sched import *
from att2 import *

LOG2E = 1.4426950408889634
NAME = "adaLN_cond__compressed_kv_cla__dense_activation_squared_relu__prompt_kernel"
SPIN = 200000
FL = WS["flags"][0]
F_S2, F_S3, F_S4, F_S5, F_S6 = 0, 8, 40, 72, 88
SWS, SDBG = 66, 64
S3ALL = 8
STAMPS = {k: i + 1 for i, k in enumerate(os.environ.get("STAMPS", "1,2,3,4,5,6,7,8,9,10,11,12").split(","))}
STAMPS["13"] = 13
CLK = "s_memtime" if os.environ.get("CYC") else "s_memrealtime"


def P(name):
    return 36 + KA[name] // 4


class Gen:
    def __init__(self):
        self.a = Asm()
        self.paths = [[]]
        self.uid = 0
        self.nst = 0

    def label(self, l, rec=True):
        self.a.label(l)
        if rec:
            for p in self.paths:
                p.append(l)

    def newlab(self, s):
        self.uid += 1
        return f"L{s}{self.uid}"

    def stamp(self, n):
        n = STAMPS.get(str(n))
        if TIMING and n is not None:
            self.a(CLK + " s[94:95]")
            self.a("s_waitcnt lgkmcnt(0)")
            self.a(f"s_mov_b32 s{80+n}, s94")

    def end(self):
        a = self.a
        if TIMING:
            a("s_waitcnt vmcnt(0) lgkmcnt(0)")
            self.stamp(13)
            a("s_mov_b64 exec, -1")
            srd_ws(a, 96, SWS, "tim")
            a("v_mov_b32 v0, 0")
            for n in range(14):
                a(f"v_writelane_b32 v0, s{80+n}, {n}")
            a("v_mbcnt_lo_u32_b32 v1, -1, 0")
            a("v_mbcnt_hi_u32_b32 v1, -1, v1")
            a("v_cmp_gt_u32 vcc, 16, v1")
            a("v_lshlrev_b32 v1, 2, v1")
            a("s_lshl_b32 s100, s2, 2")
            a(f"s_add_u32 s100, s100, s{S_W}")
            a("s_lshl_b32 s100, s100, 6")
            a("s_and_b64 exec, exec, vcc")
            a("buffer_store_dword v0, v1, s[96:99], s100 offen")
        a("s_endpgm")

    def arrive_text(self, vaddr, vone, sbase, off=0):
        return ["s_mov_b64 exec, 1", f"global_atomic_add v{vaddr}, v{vone}, s[{sbase}:{sbase+1}] offset:{off} sc1",
                "s_mov_b64 exec, -1"]

    def arrive_w0(self, vaddr, vone, sbase, off=0):
        a = self.a
        l = self.newlab("arr")
        a(f"s_cmp_lg_u32 s{S_W}, 0")
        a(f"s_cbranch_scc1 {l}")
        a(self.arrive_text(vaddr, vone, sbase, off))
        self.label(l)

    def poll_text(self, vdst, vaddr, sbase):
        return f"global_load_dword v{vdst}, v{vaddr}, s[{sbase}:{sbase+1}] sc1"

    def poll_check(self, vdst, vaddr, sbase, target):
        a = self.a
        ok, lp = self.newlab("ok"), self.newlab("sp")
        a(f"v_cmp_gt_u32 vcc, {target}, v{vdst}")
        a("s_mov_b32 s6, 0")
        a("s_cmp_eq_u64 vcc, 0")
        a(f"s_cbranch_scc1 {ok}")
        self.label(lp)
        a(self.poll_text(vdst, vaddr, sbase))
        a("s_waitcnt vmcnt(0)")
        a(f"v_cmp_gt_u32 vcc, {target}, v{vdst}")
        a("s_add_u32 s6, s6, 1")
        a(f"s_cmp_gt_u32 s6, {SPIN}")
        a(f"s_cbranch_scc1 {ok}")
        a("s_cmp_lg_u64 vcc, 0")
        a(f"s_cbranch_scc1 {lp}")
        for p in self.paths:
            p.pop()
        self.label(ok)


def code_pf(G, start, per, va, vd, st=48):
    l = G.newlab("pc")
    return [[f"s_getpc_b64 s[{st}:{st+1}]", f"{l}:", f"s_add_u32 s{st}, s{st}, {start}-{l}", f"s_addc_u32 s{st+1}, s{st+1}, 0"],
            "s_lshr_b32 s6, s2, 3", "s_lshl_b32 s6, s6, 2", f"s_add_u32 s6, s6, s{S_W}", "s_lshl_b32 s6, s6, 7",
            f"v_min_u32 v{va}, {per-1}, v{VLANE}", f"v_lshlrev_b32 v{va}, 14, v{va}", f"v_add_u32 v{va}, s6, v{va}",
            f"v_min_u32 v{va}, Lend-{start}, v{va}", f"v_mov_b32 v{va+1}, s{st+1}",
            [f"v_add_co_u32 v{va}, vcc, s{st}, v{va}", "s_nop 1", f"v_addc_co_u32 v{va+1}, vcc, 0, v{va+1}, vcc"],
            f"global_load_dword v{vd}, v[{va}:{va+1}], off"]


def round_pair(d0, d1, tmp):
    return [f"v_cvt_pk_bf16_f32 v{tmp}, v{d0}, v{d1}", f"v_lshlrev_b32 v{d0}, 16, v{tmp}",
            f"v_and_b32 v{d1}, 0xffff0000, v{tmp}"]


def items(L, **kw):
    return [item(s, **kw) for s in L]


def acc_kv(x, y, isV):
    if isV:
        late, k = x >> 2, 8 * ((x >> 1) & 1) + y
    else:
        late, k = y >> 2, 4 * (y & 3) + (x >> 1)
    return ("a" if late else "v", 8 * k + 4 * (x & 1))


def quad_red(op, regs, tmp):
    L = []
    for sw in ("32", "16"):
        L += [f"v_mov_b32 v{tmp+n}, v{r}" for n, r in enumerate(regs)]
        L.append("s_nop 1")
        L += [f"v_permlane{sw}_swap_b32 v{r}, v{tmp+n}" for n, r in enumerate(regs)]
        L += [f"{op} v{r}, v{r}, v{tmp+n}" for n, r in enumerate(regs)]
    return L


VC, VW, VCR, VWR = 192, 196, 200, 204
SPARE = 131072
RP0 = 4


def gen(G):
    a = G.a
    kernel_header(a, NAME)
    G.paths[0].append(NAME)
    a("s_cmp_ge_u32 s2, 256")
    a("s_cbranch_scc1 Lend")
    if TIMING:
        a(CLK + " s[94:95]")
    a("s_load_dwordx16 s[36:51], s[0:1], 0")
    a("s_load_dwordx16 s[52:67], s[0:1], 64")
    SC0, SW0, SLB, SOUT = 68, 70, 32, 33
    VWA = [204 + k for k in range(8)]
    VWB = [212, 213, 214, 215, 217, 218, 221, 222]
    VPOLL, VONE = 219, 223
    a(f"v_lshrrev_b32 v128, 6, v0")
    a(f"v_and_b32 v{VLANE}, 63, v0")
    a(f"v_readfirstlane_b32 s{S_W}, v128")
    a(f"s_and_b32 s{S_H}, s2, 7")
    a(f"s_lshl_b32 s{S_H}, s{S_H}, 2")
    a(f"s_lshr_b32 s{S_I}, s2, 3")
    a(f"s_and_b32 s{S_I}, s{S_I}, 3")
    a(f"s_add_u32 s{S_H}, s{S_H}, s{S_I}")
    a(f"s_lshr_b32 s{S_I}, s2, 5")
    if OPT.get("cpf", 1):
        a(code_pf(G, "Lcode0", OPT.get("cpfn", 6), 148, 147, st=70))
    a.raw("Lcode0:")
    a(f"v_lshlrev_b32 v{VL16}, 4, v{VLANE}")
    a(f"v_lshrrev_b32 v129, 4, v{VLANE}")
    a("s_mul_i32 s72, s2, 1093")
    a("s_lshr_b32 s72, s72, 16")
    a("s_mul_i32 s73, s72, 60")
    a("s_sub_u32 s73, s2, s73")
    a(f"v_and_b32 v130, 15, v{VLANE}")
    a("v_min_u32 v130, 4, v130")
    a("v_lshlrev_b32 v130, 6, v130")
    a("v_lshl_add_u32 v130, v129, 4, v130")
    a(f"v_lshrrev_b32 v132, 3, v{VLANE}")
    a("v_mul_u32_u24 v131, 7680, v132")
    a(f"v_and_b32 v133, 7, v{VLANE}")
    a("v_lshl_add_u32 v131, v133, 4, v131")
    a("s_mul_i32 s74, s72, 160")
    a(f"s_mul_i32 s75, s{S_W}, 40")
    a("s_add_u32 s75, s75, s74")
    a("s_mul_i32 s75, s75, 7680")
    a("s_lshl_b32 s6, s73, 7")
    a("s_add_u32 s75, s75, s6")
    a("s_lshl_b32 s74, s74, 1")
    a(f"s_mul_i32 s76, s{S_W}, 5120")
    a(f"s_add_u32 s76, s76, {SPARE}")
    a("v_lshlrev_b32 v132, 10, v132")
    a("v_xor_b32 v133, v133, v129")
    a(f"v_lshl_add_u32 v{VC}, v133, 4, v132")
    a(f"v_xor_b32 v{VC+1}, 64, v{VC}")
    a(f"v_add_u32 v{VC+1}, {8192-1024}, v{VC+1}")
    a(f"v_add_u32 v{VC+2}, {2*(8192-1024)}, v{VC}")
    a(f"v_add_u32 v{VC+3}, {2*(8192-1024)}, v{VC+1}")
    a(f"v_lshrrev_b32 v133, 1, v{VLANE}")
    a("v_and_b32 v133, 7, v133")
    a("v_xor_b32 v133, v133, v129")
    a("v_lshlrev_b32 v133, 5, v133")
    a(f"v_and_b32 v134, 1, v{VLANE}")
    a("v_lshl_add_u32 v133, v134, 4, v133")
    a(f"v_lshl_add_u32 v{VW}, v129, 13, v133")
    a(f"v_add_u32 v{VW+1}, {32768-1024}, v{VW}")
    a(f"v_xor_b32 v{VW+2}, 128, v{VW}")
    a(f"v_add_u32 v{VW+3}, {3*(32768-1024)}, v{VW+2}")
    a(f"v_add_u32 v{VW+2}, {2*(32768-1024)}, v{VW+2}")
    a(f"s_lshl_b32 s{SC0}, s{S_I}, 17")
    a(f"s_lshr_b32 s6, s{S_W}, 1")
    a("s_lshl_b32 s6, s6, 16")
    a(f"s_add_u32 s{SC0}, s{SC0}, s6")
    a(f"s_and_b32 s7, s{S_W}, 1")
    a("s_lshl_b32 s6, s7, 20")
    a(f"s_add_u32 s{SC0}, s{SC0}, s6")
    a(f"s_add_u32 s{SC0+1}, s{SC0}, 32768")
    a(f"s_lshl_b32 s{SW0}, s7, 18")
    a(f"s_lshl_b32 s6, s{S_H}, 8")
    a(f"s_add_u32 s{SW0}, s{SW0}, s6")
    a(f"s_add_u32 s{SW0+1}, s{SW0}, 131072")
    a(f"s_lshl_b32 s{SLB}, s{S_W}, 13")
    VPC, VPW, SPC, SPW = 254, 255, 34, 35
    a(f"v_lshrrev_b32 v{VPC}, 2, v{VLANE}")
    a(f"v_lshlrev_b32 v{VPC}, 10, v{VPC}")
    a(f"v_lshrrev_b32 v{VPW}, 3, v{VLANE}")
    a(f"v_and_b32 v{VPW}, 1, v{VPW}")
    a(f"v_lshlrev_b32 v{VPW}, 7, v{VPW}")
    a(f"v_lshl_add_u32 v{VPW}, v129, 13, v{VPW}")
    a(f"v_and_b32 v134, 3, v{VLANE}")
    a(f"v_lshl_add_u32 v144, v134, 7, v{VPC}")
    a(f"v_lshl_add_u32 v145, v134, 19, v{VPW}")
    a(f"s_lshl_b32 s{SPC}, s{S_I}, 17")
    a(f"s_bfe_u32 s6, s{S_H}, 0x10001")
    a("s_lshl_b32 s6, s6, 16")
    a(f"s_add_u32 s{SPC}, s{SPC}, s6")
    a(f"s_and_b32 s6, s{S_H}, 1")
    a("s_lshl_b32 s6, s6, 20")
    a(f"s_add_u32 s{SPC}, s{SPC}, s6")
    a(f"s_lshl_b32 s6, s{S_W}, 14")
    a(f"s_add_u32 s{SPC}, s{SPC}, s6")
    a(f"s_lshl_b32 s{SPW}, s{S_I}, 1")
    a(f"s_add_u32 s{SPW}, s{SPW}, s7")
    a(f"s_lshl_b32 s{SPW}, s{SPW}, 15")
    a(f"s_lshl_b32 s6, s{S_H}, 8")
    a(f"s_add_u32 s{SPW}, s{SPW}, s6")
    a("s_waitcnt lgkmcnt(0)")
    if TIMING:
        a("s_mov_b32 s80, s94")
        for n in range(1, 14):
            a(f"s_mov_b32 s{80+n}, 0")
    vm = VmTrack()
    srd_in(a, 24, P("c"), SZ["c"])
    a("buffer_load_dwordx4 v[136:139], v130, s[24:27], s74 offen")
    vm.issue("c")
    srd_in(a, 8, P("ckv"), SZ["ckv"])
    a(f"s_cmp_ge_u32 s{S_W}, 2")
    a(f"s_cselect_b32 s12, s{P('wuv')}, s{P('wuk')}")
    a(f"s_cselect_b32 s13, s{P('wuv')+1}, s{P('wuk')+1}")
    a("s_and_b32 s13, s13, 0xffff")
    a(f"s_mov_b32 s14, {SZ['wuk']}")
    a("s_mov_b32 s15, 0x20000")

    PF0 = OPT.get("pf0", 0)
    if not PF0:
        a(f"s_add_u32 s{SPW}, s{SPW}, {OPT.get('pfs', 2) << 19}")
    if OPT["prefetch"] and PF0:
        a(f"buffer_load_dword v146, v145, s[12:15], s{SPW} offen")
        a(f"buffer_load_dword v146, v144, s[8:11], s{SPC} offen")
        vm.issue("pf")
        vm.issue("pf")
        a(f"s_add_u32 s{SPW}, s{SPW}, {4 << 19}")
    srd_in(a, 16, P("wmod"), SZ["wmod"])
    for n in range(5):
        a(f"s_add_u32 m0, s76, {1024*n}")
        a(f"s_add_u32 s6, s75, {8*7680*n}")
        a("buffer_load_dwordx4 v131, s[16:19], s6 offen lds")
        vm.issue("G")

    def dma_tile(vm, t):
        st = (t & 1) * 65536
        L = []
        for (vb, srd, so, lo) in ((VC, 8, SC0, 0), (VW, 12, SW0, 32768)):
            for half in range(2):
                m = item(f"s_add_u32 m0, s{SLB}, {st + lo + half*4096}")
                L.append(m)
                for n in range(4):
                    it = vitem(vm, ("T", t), f"buffer_load_dwordx4 v{vb+n}, s[{srd}:{srd+3}], s{so+half} offen offset:{1024*n} lds")
                    if n == 0:
                        it["after"], it["dist"] = m, 1
                    L.append(it)
        L += items([f"s_add_u32 s{SC0}, s{SC0}, 128", f"s_add_u32 s{SC0+1}, s{SC0+1}, 128",
                    f"s_add_u32 s{SW0}, s{SW0}, {64*8192}", f"s_add_u32 s{SW0+1}, s{SW0+1}, {64*8192}"])
        return L
    flat(a, dma_tile(vm, 0))
    a(f"v_mov_b32 v{VONE}, 1")
    a("s_mul_i32 s6, s72, 20")
    a("s_add_u32 s6, s6, s73")
    a("s_lshl_b32 s6, s6, 8")
    a(f"s_add_u32 s6, s6, {FL}")
    a(f"v_mul_u32_u24 v134, {80*256}, v{VLANE}")
    a("v_add_u32 v134, s6, v134")
    for r in range(140, 144):
        a(f"v_mov_b32 v{r}, 0")
    a("s_cmp_lt_u32 s73, 20")
    a("s_cselect_b32 s77, 0, 128")
    a("s_cselect_b32 s6, 0, 1")
    a(f"s_or_b32 s6, s6, s{S_W}")
    a("s_lshr_b32 s7, s72, 2")
    a("s_or_b32 s6, s6, s7")
    a("s_cmp_lg_u32 s6, 0")
    a("s_cbranch_scc1 Lnozero")
    a("s_mov_b64 exec, 3")
    a(f"global_store_dwordx4 v134, v[140:143], s[{SWS}:{SWS+1}] sc1")
    a("s_mov_b64 exec, -1")
    G.label("Lnozero")
    a("s_nop 1")
    a(f"s_lshl_b32 s6, s{S_I}, 4")
    a(f"s_add_u32 s6, s6, s{S_H}")
    a(f"s_sub_u32 s7, 14, s{S_I}")
    a("s_lshl_b32 s7, s7, 4")
    a(f"s_add_u32 s7, s7, s{S_H}")
    a(f"s_cmp_lt_u32 s{S_H}, 16")
    a("s_cselect_b32 s6, s6, s7")
    a("s_lshl_b32 s6, s6, 1")
    a(f"s_and_b32 s7, s{S_W}, 1")
    a("s_add_u32 s6, s6, s7")
    a("s_mul_i32 s78, s6, 5120")
    a(f"v_and_b32 v134, 15, v{VLANE}")
    a("v_lshrrev_b32 v135, 1, v134")
    a("v_xor_b32 v135, v135, v129")
    a("v_lshlrev_b32 v135, 4, v135")
    a("v_lshl_add_u32 v135, v134, 7, v135")
    a(f"s_and_b32 s7, s{S_W}, 1")
    a("s_lshl_b32 s6, s7, 14")
    a(f"v_add_u32 v{VCR}, s6, v135")
    a(f"v_xor_b32 v{VCR+1}, 64, v{VCR}")
    a(f"v_add_u32 v{VCR+2}, 65536, v{VCR}")
    a(f"v_add_u32 v{VCR+3}, 65536, v{VCR+1}")
    a(f"v_lshrrev_b32 v134, 2, v{VLANE}")
    a("v_and_b32 v135, 3, v134")
    a("v_lshl_add_u32 v135, v129, 3, v135")
    a(f"v_and_b32 v142, 3, v{VLANE}")
    a("v_lshlrev_b32 v142, 3, v142")
    a("v_lshl_add_u32 v143, v135, 7, v142")
    a("v_lshl_add_u32 v135, v135, 8, v142")
    a("v_and_b32 v134, 7, v134")
    a("v_lshl_add_u32 v135, v134, 5, v135")
    a(f"s_lshr_b32 s6, s{S_W}, 1")
    a("s_lshl_b32 s6, s6, 14")
    a("s_add_u32 s6, s6, 32768")
    a("v_add_u32 v135, s6, v135")
    for db in range(8):
        a(f"v_xor_b32 v{VWA[db]}, {32*db}, v135")
        a(f"v_add_u32 v{VWB[db]}, 65536, v{VWA[db]}")
    a(f"s_cmp_ge_u32 s{S_W}, 2")
    a(f"s_mov_b32 s6, {WS['kf'][0]}")
    a(f"s_cselect_b32 s6, {WS['vf'][0]}, s6")
    a(f"s_add_u32 s28, s{SWS}, s6")
    a(f"s_addc_u32 s29, s{SWS+1}, 0")
    a("s_and_b32 s29, s29, 0xffff")
    a(f"s_mov_b32 s30, {WS['kf'][1]}")
    a("s_mov_b32 s31, 0x20000")
    a(f"s_mul_i32 s{SOUT}, s{S_H}, {HSTR}")
    a(f"s_lshl_b32 s6, s{S_I}, 15")
    a(f"s_add_u32 s{SOUT}, s{SOUT}, s6")
    a("s_lshl_b32 s6, s7, 14")
    a(f"s_add_u32 s{SOUT}, s{SOUT}, s6")
    srd_ws(a, 20, SWS, "modp")
    G.stamp("pre")
    a(vm.wait({"c", "pf"}))
    G.stamp("c")
    for j in range(4):
        a(f"v_lshlrev_b32 v{144+2*j}, 16, v{136+j}")
        a(f"v_and_b32 v{145+2*j}, 0xffff0000, v{136+j}")
    for j in range(8):
        a(f"v_mul_f32 v{152+j}, {hex(f32bits(-LOG2E))}, v{144+j}")
    for j in range(8):
        a(f"v_exp_f32 v{152+j}, v{152+j}")
    for j in range(8):
        a(f"v_add_f32 v{152+j}, 1.0, v{152+j}")
    for j in range(8):
        a(f"v_rcp_f32 v{152+j}, v{152+j}")
    for j in range(8):
        a(f"v_mul_f32 v{152+j}, v{144+j}, v{152+j}")
    for j in range(4):
        a(f"v_cvt_pk_bf16_f32 v{136+j}, v{152+2*j}, v{153+2*j}")
    a(f"s_lshl_b32 s6, s{S_W}, 9")
    a(f"s_add_u32 s6, s6, {SPARE + 20480}")
    a("v_add_u32 v130, s6, v130")
    a("ds_write_b128 v130, v[136:139]")
    a("v_lshl_add_u32 v130, v129, 4, s6")
    a(f"s_lshl_b32 s6, s{S_W}, 5")
    a(f"s_add_u32 s6, s6, {SPARE}")
    a("v_add_u32 v143, s6, v143")
    a(vm.wait({"G"}, lgkm=0))
    a("s_barrier")
    G.stamp("g")
    for ks in range(5):
        a(f"ds_read_b128 v[{144+4*ks}:{147+4*ks}], v130 offset:{64*ks}")
        a(f"ds_read_b64_tr_b16 v[{164+4*ks}:{165+4*ks}], v143 offset:{4096*ks}")
        a(f"ds_read_b64_tr_b16 v[{166+4*ks}:{167+4*ks}], v143 offset:{4096*ks+512}")
    a("s_mul_i32 s6, s72, 15360")
    a("s_lshl_b32 s7, s73, 8")
    a("s_add_u32 s6, s6, s7")
    a(f"s_lshl_b32 s7, s{S_W}, 6")
    a("s_add_u32 s6, s6, s7")
    a(f"v_lshlrev_b32 v134, 2, v{VLANE}")
    a("s_waitcnt lgkmcnt(0)")
    for ks in range(5):
        a(f"{MF} v[184:187], v[{144+4*ks}:{147+4*ks}], v[{164+4*ks}:{167+4*ks}], {'0' if ks == 0 else 'v[184:187]'}")
    a("s_nop 7")
    a("s_mov_b64 exec, 0xffff")
    a("buffer_store_dword v184, v134, s[20:23], s6 offen sc1")
    vm.issue("P")
    a("s_mov_b64 exec, -1")
    flat(a, dma_tile(vm, 1))
    def pf(vm, t, junk=SPARE + 8192):
        if not OPT["prefetch"] or t > 7:
            return []
        m = item(f"s_mov_b32 m0, {junk}")
        return [m, vitem(vm, "pf", f"buffer_load_dword v{VPC}, s[8:11], s{SPC} offen offset:{128*t} lds", after=m, dist=1, w=8),
                vitem(vm, "pf", f"buffer_load_dword v{VPW}, s[12:15], s{SPW} offen lds"),
                item(f"s_add_u32 s{SPW}, s{SPW}, {1 << 19}")]
    a(f"s_cmp_ge_u32 s{S_W}, 2")
    a("s_cbranch_scc1 LkvV")

    SWQ, SLQ, SHO = 58, 59, 42
    SBLK = 72
    SRD_WQ, SRD_H = 16, 76
    VWD, VH = VW, VW + 2
    VQR = VWA
    HSLOT = [("v", 224), ("v", 240), ("a", 160), ("a", 176), ("a", 128), ("a", 144)]
    AWB = [192, 224]

    HPOL = [" sc1", " sc1 nt", " nt", ""][OPT.get("hpol", 0)]

    def wq_slot(ks):
        return 8192 * ks if ks < 8 else 131072 + 8192 * (ks - 8) if ks < 12 else 65536 + 8192 * (ks - 12)
    HS = {k: HSLOT[k] for k in range(6)}

    def w_dma(vm, ks):
        m = item(f"s_add_u32 m0, s{SLQ}, {wq_slot(ks)}")
        L = [m]
        for n in range(2):
            L.append(vitem(vm, ("W", ks), f"buffer_load_dwordx4 v{VWD+n}, s[{SRD_WQ}:{SRD_WQ+3}], s{SWQ} offen offset:{1024*n} lds"))
        L[1]["after"], L[1]["dist"] = m, 1
        L.append(item(f"s_add_u32 s{SWQ}, s{SWQ}, {32*8192}"))
        return L

    def h_load(vm, ks):
        L = []
        f, b = HS[ks]
        for g in range(4):
            L.append(vitem(vm, ("H", ks), f"buffer_load_dwordx4 {R(f, b+4*g, 4)}, v{VH}, s[{SRD_H}:{SRD_H+3}], s{SHO+g} offen offset:{256*(ks % 16)}{HPOL}"))
            if ks == 15:
                L.append(item(f"s_add_u32 s{SHO+g}, s{SHO+g}, 4096"))
        return L

    def wq_reads(ks):
        L = []
        o = wq_slot(ks) - (0 if ks < 8 else 131072 if ks < 12 else 65536)
        for db in range(8):
            r = AWB[ks & 1] + 4 * db
            if ks == 8:
                L.append(f"v_add_u32 v{VQR[db]}, 131072, v{VQR[db]}")
            if ks == 12:
                L.append(f"v_subrev_u32 v{VQR[db]}, 65536, v{VQR[db]}")
            L.append(f"ds_read_b64_tr_b16 a[{r}:{r+1}], v{VQR[db]} offset:{o}")
            L.append(f"ds_read_b64_tr_b16 a[{r+2}:{r+3}], v{VQR[db]} offset:{o+1024}")
        return L

    def srd_items(f, *args):
        t = Asm()
        t.cur = None
        f(t, *args)
        return items([l.strip() for l in t.lines])

    def qsetup_scalar():
        L = srd_items(srd_ws, SRD_H, SWS, "hf")
        S = [f"s_lshl_b32 s{SBLK}, s{S_I}, 3", f"s_add_u32 s{SBLK}, s{SBLK}, s{S_W}", f"s_add_u32 s{SBLK+1}, s{SBLK}, 4",
             f"s_sub_u32 s{SBLK+2}, 15, s{S_I}", f"s_lshl_b32 s{SBLK+2}, s{SBLK+2}, 3",
             f"s_add_u32 s{SBLK+2}, s{SBLK+2}, s{S_W}", f"s_add_u32 s{SBLK+3}, s{SBLK+2}, 4"]
        S += [f"s_mul_i32 s{SHO+g}, s{SBLK+g}, 20480" for g in range(4)]
        S += [f"s_lshl_b32 s{SWQ}, s{S_W}, 16", f"s_lshl_b32 s{SLQ}, s{S_H}, 8", f"s_add_u32 s{SWQ}, s{SWQ}, s{SLQ}",
              f"s_lshl_b32 s{SLQ}, s{S_W}, 11"]
        out = []
        for it in L:
            if it["s"].startswith("s_addc"):
                out[-1] = item([out[-1]["s"], it["s"]], 2)
            else:
                out.append(it)
        return out + items(S)

    def glue(L):
        out = []
        for it in L:
            s = it["s"]
            if isinstance(s, str) and s.startswith(("s_addc", "s_cselect")):
                p = out[-1]["s"]
                p = p if isinstance(p, list) else [p]
                out[-1] = item(p + [s], 2)
            else:
                out.append(it)
        return out

    ST = 128

    def kv_reads(ks, isV):
        t, k = ks >> 1, ks & 1
        st = t & 1
        base = ST + 64 * (~ks & 1)
        cb = base + (0 if isV else 32)
        wb = base + (32 if isV else 0)
        Lc = [f"ds_read_b128 a[{cb+4*y}:{cb+4*y+3}], v{VCR+2*st+k} offset:{2048*y}" for y in range(8)]
        Lw = []
        for db in range(8):
            v = (VWB if st else VWA)[db]
            Lw.append(f"ds_read_b64_tr_b16 a[{wb+4*db}:{wb+4*db+1}], v{v} offset:{8192*k}")
            Lw.append(f"ds_read_b64_tr_b16 a[{wb+4*db+2}:{wb+4*db+3}], v{v} offset:{8192*k+1024}")
        return (Lw + Lc) if isV else (Lc + Lw)

    vm0 = list(vm.q)
    path0 = list(G.paths[0])
    endq = []
    allpaths = []
    for isV in (False, True):
        vm = VmTrack(vm0)
        G.paths = [list(path0)]
        G.label("LkvV" if isV else "LkvK")
        side = {k: dict(pre=[], cold=[], post=[], need=set(), code=None) for k in range(16)}
        if PF0:
            side[0]["cold"] += pf(vm, 4)
            for k in (1, 3, 5):
                side[k]["cold"] += pf(vm, (k + 9) // 2)
        elif OPT.get("pfm", 1):
            for k in range(OPT.get("pfs", 2), 4):
                side[0]["cold"] += pf(vm, k)
            for k in (1, 3, 5, 7):
                side[k]["cold"] += pf(vm, (k + 7) // 2)
        XN, MA = 128, [168 + 4 * k for k in range(6)] + [224 + 4 * k for k in range(6)]
        if not isV:
            srd_in(a, 24, P("x"), SZ["x"])
            a(f"v_and_b32 v252, 3, v{VLANE}")
            a("v_mul_u32_u24 v252, 1280, v252")
            a(f"v_lshrrev_b32 v253, 2, v{VLANE}")
            a("v_lshl_add_u32 v252, v253, 4, v252")
            a(f"v_lshlrev_b32 v253, 5, v253")
            a(f"v_add_u32 v253, {SPARE}, v253")
            side[0]["cold"] += [vitem(vm, "X", f"buffer_load_dwordx4 v[{MA[n]}:{MA[n]+3}], v252, s[24:27], s78 offen offset:{256*n}", w=8)
                                for n in range(5)]
            side[3]["need"].add("X")
            L = []
            for n in range(5):
                for j in range(4):
                    L += [f"v_lshlrev_b32 v{XN+8*n+2*j}, 16, v{MA[n]+j}", f"v_and_b32 v{XN+8*n+2*j+1}, 0xffff0000, v{MA[n]+j}"]
            L.append(f"v_add_f32 v248, v{XN}, v{XN+1}")
            L += [f"v_add_f32 v248, v248, v{XN+j}" for j in range(2, 40)]

            def rowred(r):
                o = []
                for sh in (4, 8):
                    o.append(item(["s_nop 1", f"v_add_f32_dpp v{r}, v{r}, v{r} row_ror:{sh} row_mask:0xf bank_mask:0xf"], 2))
                for sw in ("32", "16"):
                    o.append(item([f"v_mov_b32 v250, v{r}", "s_nop 1"], 2))
                    o.append(item([f"v_permlane{sw}_swap_b32 v{r}, v250", f"v_add_f32 v{r}, v{r}, v250"], 2))
                return o
            side[2]["post"] = items(["v_mov_b32 v251, 0", f"v_lshrrev_b32 v252, 5, v{VLANE}", f"v_lshl_add_u32 v252, v252, 30, v{VL16}"])
            side[3]["cold"] += [vitem(vm, "p1", G.poll_text(VPOLL, 251, SDBG), e=OPT.get("p1e", 50))]
            side[3]["post"] = items(L[:44])
            side[4]["post"] = items(L[44:]) + rowred(248) + items([f"v_mul_f32 v248, {hex(f32bits(1/640))}, v248"])
            side[5]["need"].add("p1")

            def s1_check():
                G.poll_check(VPOLL, 251, SDBG, 80)
                a(f"s_cmp_lg_u32 s{S_W}, 0")
                a("s_cbranch_scc1 Lnoreg")
                a("s_getreg_b32 s6, hwreg(HW_REG_XCC_ID, 0, 4)")
                a("s_cmp_lt_u32 s6, 8")
                a("s_cselect_b32 s48, 1, 0")
                a("s_mov_b32 s49, 0")
                a("s_lshl_b32 s7, s6, 2")
                a("s_lshl_b32 s7, s48, s7")
                a("v_mov_b32 v249, s7")
                a(f"s_lshl_b32 s7, s{S_H}, 8")
                a(f"s_add_u32 s7, s7, {FL + 256*F_S3 + 4}")
                a("v_mov_b32 v250, s7")
                a(G.arrive_text(250, 249, SWS))
                a("s_lshl_b32 s6, s6, 3")
                a("s_lshl_b64 s[48:49], s[48:49], s6")
                a("s_and_b32 s6, s2, 7")
                a("s_lshl_b32 s6, s6, 1")
                a("s_bfe_u32 s7, s2, 0x10003")
                a("s_add_u32 s6, s6, s7")
                a("s_lshl_b32 s6, s6, 8")
                a(f"s_add_u32 s6, s6, {FL + 256*F_S5 + 8}")
                a("v_mov_b32 v249, s6")
                a("v_mov_b32 v250, s48")
                a("v_mov_b32 v251, s49")
                a("s_mov_b64 exec, 1")
                a(f"global_atomic_add_x2 v249, v[250:251], s[{SWS}:{SWS+1}] sc1")
                a("s_mov_b64 exec, -1")
                G.label("Lnoreg")
            side[5]["code"] = s1_check
            Lm = [item(f"s_mul_i32 s48, s{S_W}, 2560")]
            for p in range(4):
                for rnd in range(3):
                    r = MA[3 * p + rnd]
                    Lm.append(vitem(vm, "M", f"buffer_load_dwordx4 v[{r}:{r+3}], v{VL16 if rnd < 2 else 252}, s[20:23], s48 offen offset:{1024*rnd} sc1", w=2))
                if p < 3:
                    Lm.append(item("s_add_u32 s48, s48, 15360"))
            side[5]["pre"] += Lm
            side[4]["post"] += items([f"v_sub_f32 v{XN+j}, v{XN+j}, v248" for j in range(40)])
            L2 = [f"v_mul_f32 v249, v{XN}, v{XN}"] + [f"v_fmac_f32 v249, v{XN+j}, v{XN+j}" for j in range(1, 40)]
            side[5]["post"] = items(L2[:30])
            L7 = items(L2[30:]) + rowred(249)
            L7 += items([f"v_mov_b32 v250, {hex(f32bits(1e-5))}", f"v_fmac_f32 v250, {hex(f32bits(1/640))}, v249"])
            L7 += [item(["v_rsq_f32 v249, v250", "s_nop 0"], 2)]
            L7 += items([f"v_mul_f32 v{XN+j}, v249, v{XN+j}" for j in range(16)])
            L7 += glue(srd_items(srd_ws, 24, SWS, "hf")) + items(["s_add_u32 s79, s78, 4096"])
            side[6]["need"].add("M")
            side[5]["post"] += glue(items([f"s_cmp_eq_u32 s{S_W}, 1", "s_cselect_b32 s39, 1.0, 0"])) + \
                items([f"s_mov_b32 s49, {hex(f32bits(QSCALE))}", f"s_mul_i32 s60, s{S_W}, 3072",
                       f"s_add_u32 s60, s60, {SPARE}", f"v_add_u32 v251, s60, v{VL16}"])
            F = []
            for rnd in range(3):
                b = MA[rnd]
                T = []
                for t in range(4):
                    T += [f"v_add_f32 v{b+t}, v{b+t}, v{MA[3+rnd]+t}", f"v_add_f32 v{MA[6+rnd]+t}, v{MA[6+rnd]+t}, v{MA[9+rnd]+t}",
                          f"v_add_f32 v{b+t}, v{b+t}, v{MA[6+rnd]+t}"]
                T += round_pair(b, b + 1, 250) + round_pair(b + 2, b + 3, 250)
                T += [f"v_add_f32 v{b+t}, s39, v{b+t}" for t in range(4)]
                T += round_pair(b, b + 1, 250) + round_pair(b + 2, b + 3, 250)
                T += [f"v_mul_f32 v{b+t}, s49, v{b+t}" for t in range(4)]
                T += [f"ds_write_b128 v251, v[{b}:{b+3}] offset:{1024*rnd}"]
                F += items(T)
            side[6]["post"] = F

            def ab_reads(ns):
                o = []
                for k, n in enumerate(ns):
                    for q, off in enumerate((512 * n, 512 * n + 16, 3072 + 512 * n, 3072 + 512 * n + 16)):
                        r = MA[4 * k + q]
                        o.append(item(f"ds_read_b128 v[{r}:{r+3}], v253 offset:{off}", mem=1))
                return o

            def h_calc(ns, k0=0):
                o = []
                for k, n in enumerate(ns):
                    k += k0
                    for t in range(8):
                        sh = MA[4 * k + (t >> 2)] + (t & 3)
                        sc = MA[4 * k + 2 + (t >> 2)] + (t & 3)
                        o.append(item(f"v_fmac_f32 v{sh}, v{XN+8*n+t}, v{sc}"))
                    for t in range(4):
                        sh = MA[4 * k + (t >> 1)] + 2 * (t & 1)
                        o.append(item(f"v_cvt_pk_bf16_f32 v{XN+8*n+t}, v{sh}, v{sh+1}"))
                    o.append(vitem(vm, "Hs", f"buffer_store_dwordx4 v[{XN+8*n}:{XN+8*n+3}], v{VL16}, s[24:27], "
                                             f"s{78 if n < 4 else 79} offen offset:{1024*(n % 4)} sc1"))
                return o
            side[7]["post"] = ab_reads([0, 1, 2]) + L7
            side[8]["post"] = h_calc([0, 1]) + ab_reads([3, 4]) + \
                items([f"v_mul_f32 v{XN+j}, v249, v{XN+j}" for j in range(16, 40)]) + h_calc([2], 2) + \
                [item("s_waitcnt lgkmcnt(0)", 0, e=40)] + h_calc([3, 4])
            side[8]["rdend"] = 32
            L9 = items([f"s_lshl_b32 s48, s{S_I}, 8", f"s_add_u32 s48, s48, {FL + 256*F_S2}", "v_mov_b32 v251, s48"])
            L9 += [item(lambda: [vm.wait({"Hs"})] + G.arrive_text(251, VONE, SWS), 2, e=52)]
            side[9]["post"] = L9
        else:
            a(f"s_lshl_b32 s38, s2, 1")
            a(f"s_and_b32 s6, s{S_W}, 1")
            a("s_add_u32 s38, s38, s6")
            FD = 168
            side[6]["post"] += [item("v_mov_b32 v251, 128")]
            side[7]["cold"] += [vitem(vm, "p1", G.poll_text(VPOLL, 251, SDBG))]
            side[9]["need"].add("p1")
            def fin_check():
                a("s_cmp_ge_u32 s38, 10")
                a("s_cbranch_scc1 Lfinskip")
                G.poll_check(VPOLL, 251, SDBG, 160)
                G.label("Lfinskip")
            side[9]["code"] = fin_check
            S = glue(items(["s_cmp_lt_u32 s38, 10", "s_cselect_b32 s22, s22, 0", "s_lshl_b32 s48, s38, 10",
                            "s_add_u32 s48, s48, 5120", "s_mov_b32 s49, s48"]))
            for p in range(4):
                S.append(vitem(vm, "Fm", f"buffer_load_dwordx4 v[{FD+4*p}:{FD+4*p+3}], v{VL16}, s[20:23], s49 offen sc1"))
                S.append(item("s_add_u32 s49, s49, 15360"))
            side[9]["cold"] += S
            side[12]["need"].add("Fm")
            T = []
            for t in range(4):
                T += [f"v_add_f32 v{FD+t}, v{FD+t}, v{FD+4+t}", f"v_add_f32 v{FD+8+t}, v{FD+8+t}, v{FD+12+t}",
                      f"v_add_f32 v{FD+t}, v{FD+t}, v{FD+8+t}"]
            T += round_pair(FD, FD + 1, 165) + round_pair(FD + 2, FD + 3, 165)
            T += ["s_lshl_b32 s49, s38, 6", "s_sub_u32 s49, s49, 160", f"v_add_u32 v184, s49, v{VLANE}",
                  "v_subrev_u32 v185, 160, v184", "v_cmp_gt_u32 vcc, 160, v185"]
            T2 = items(T) + [item(["s_nop 1", "v_cndmask_b32 v186, 0, 1.0, vcc"], 2),
                             item("v_cndmask_b32 v185, v184, v185, vcc"),
                             item("v_mov_b32 v187, 1280"), item("v_cndmask_b32 v187, v187, 0, vcc")]
            T = [f"v_add_f32 v{FD+t}, v186, v{FD+t}" for t in range(4)]
            T += [f"v_cvt_pk_bf16_f32 v188, v{FD}, v{FD+1}", f"v_cvt_pk_bf16_f32 v189, v{FD+2}, v{FD+3}",
                  f"v_lshlrev_b32 v{FD}, 16, v188", f"v_and_b32 v{FD+1}, 0xffff0000, v188",
                  f"v_lshlrev_b32 v{FD+2}, 16, v189", f"v_and_b32 v{FD+3}, 0xffff0000, v189",
                  "v_lshrrev_b32 v190, 3, v185", "v_lshl_add_u32 v187, v190, 6, v187",
                  "v_and_b32 v190, 3, v185", "v_lshl_add_u32 v187, v190, 4, v187",
                  "v_and_b32 v190, 4, v185", "v_lshl_add_u32 v187, v190, 1, v187",
                  "v_add_u32 v187, 15360, v187", "v_mov_b32 v190, 320", "v_cmp_gt_u32 vcc, v190, v184"]
            T2 += items(T) + [item(["s_nop 1", "v_cndmask_b32 v187, -1, v187, vcc"], 2)]
            T2 += glue(srd_items(srd_ws, 20, SWS, "modf", 17920) + items(["s_cmp_lt_u32 s38, 10", "s_cselect_b32 s22, s22, 0"]))
            T2 += [vitem(vm, "Fs", f"buffer_store_dwordx4 v[{FD}:{FD+3}], v{VL16}, s[20:23], s48 offen sc1"),
                   vitem(vm, "Fs", "buffer_store_dwordx2 v[188:189], v187, s[20:23], 0 offen sc1")]
            side[12]["post"] += T2
        side[1]["need"].add("P")
        if not isV:
            def s1_arrive():
                a(f"s_lshr_b32 s6, s72, 2")
                a(f"s_or_b32 s6, s6, s{S_W}")
                a("v_mov_b32 v251, s77")
                a("s_cmp_lg_u32 s6, 0")
                a("s_cbranch_scc1 Lnos1")
                a(G.arrive_text(251, VONE, SDBG))
                G.label("Lnos1")
            side[1]["code"] = s1_arrive
        Q10 = srd_items(srd_in, SRD_WQ, P("wq"), SZ["wq"])
        if OPT["prefetch"]:
            Q10 += items([f"v_min_u32 v{VPW}, 39, v{VLANE}", f"v_lshrrev_b32 v{VPC}, 1, v{VPW}", f"v_lshlrev_b32 v{VPC}, 13, v{VPC}",
                          f"v_and_b32 v{VPW}, 1, v{VPW}", f"v_lshl_add_u32 v{VPC}, v{VPW}, 7, v{VPC}",
                          f"s_lshl_b32 s{SPW}, s{S_I}, 2", f"s_add_u32 s{SPW}, s{SPW}, s{S_W}", f"s_mul_i32 s{SPW}, s{SPW}, {20*8192}",
                          f"s_lshl_b32 s7, s{S_H}, 8", f"s_add_u32 s{SPW}, s{SPW}, s7"])
            m = item(f"s_mov_b32 m0, {SPARE + 8192}")
            Q10 += [m, vitem(vm, "pf", f"buffer_load_dword v{VPC}, s[{SRD_WQ}:{SRD_WQ+3}], s{SPW} offen lds", after=m, dist=1, w=20)]
        side[OPT.get("pfq", 9)]["cold"] += Q10
        if isV:
            side[10]["post"] += items([f"s_lshl_b32 s61, s{S_I}, 8", f"s_add_u32 s61, s61, {FL + 256*F_S2}", "v_mov_b32 v251, s61"])
        side[10]["post"] += qsetup_scalar()
        Q12 = []
        Q12 += items([f"s_and_b32 s61, s{S_W}, 1", "s_lshl_b32 s61, s61, 7", f"v_xor_b32 v{VWD}, s61, v{VW}",
                      f"v_add_u32 v{VWD+1}, {32768-1024}, v{VWD}",
                      f"v_and_b32 v{VH}, 3, v{VLANE}", f"v_lshlrev_b32 v{VH}, 4, v{VH}",
                      f"v_lshrrev_b32 v{VW+3}, 4, v{VLANE}", f"v_lshl_add_u32 v{VH}, v{VW+3}, 6, v{VH}",
                      f"v_bfe_u32 v{VW+3}, v{VLANE}, 2, 2", f"v_mul_u32_u24 v{VW+3}, 5120, v{VW+3}",
                      f"v_add_u32 v{VH}, v{VH}, v{VW+3}"])
        for it in Q12:
            it["e"] = 10
        side[12]["post"] += Q12
        side[OPT.get("p2s", 12)]["cold"] += [vitem(vm, "p2", G.poll_text(VPOLL, 251, SWS), e=OPT.get("p2e", 10))]
        side[13]["need"].add("p2")
        side[13]["code"] = lambda: G.poll_check(VPOLL, 251, SWS, 64)
        NW0 = OPT.get("nw0", 17)
        wl = [w_dma(vm, k) for k in range(NW0)]
        side[13]["cold"] = sum(wl[0:7], [])
        side[14]["cold"] = h_load(vm, 0) + sum(wl[7:12], [])
        side[15]["cold"] = h_load(vm, 1) + sum(wl[12:], [])
        for k in (13, 14, 15):
            side[k]["coldend"] = 58
        Q14 = items([f"s_lshr_b32 s7, s{S_W}, 1", "s_lshl_b32 s7, s7, 14", "s_add_u32 s7, s7, 32768"])
        Q14 += items([f"v_subrev_u32 v{VQR[db]}, s7, v{VWA[db]}" for db in range(8)])
        side[14]["post"] = Q14 + side[14]["post"]
        side[15]["need"].add(("W", 0))

        a(vm.wait({("T", 0)}))
        a("s_barrier")
        G.stamp(1)
        for n, s in enumerate(kv_reads(0, isV)):
            a(s)
            if n == 11:
                a("s_waitcnt lgkmcnt(4)")
        ta, carry = [0], []
        for ks in range(16):
            t = ks >> 1
            base = ST + 64 * (~ks & 1)
            mf = []
            for x in range(8):
                for y in range(8):
                    f, b = acc_kv(x, y, isV)
                    c = "0" if ks == 0 else R(f, b, 4)
                    mf.append([f"{MF} {R(f, b, 4)}, a[{base+4*x}:{base+4*x+3}], a[{base+32+4*y}:{base+32+4*y+3}], {c}", []])
            sd = side[ks]
            need = set(sd["need"])
            if ks & 1:
                need.add(("T", t + 1))
            if carry and os.environ.get("DBG"):
                print("  carry into", ks, [it.get("tag") or it["s"][:12] for it in carry])
            assert not any(it.get("tag") in need for it in carry), (ks, need)
            a(vm.wait(need, lgkm=0))
            first = mf.pop(0)
            a(first[0])
            if ks & 1:
                a("s_barrier")
            if sd["code"]:
                sd["code"]()
            G.stamp(f"a{ks}")
            rd = items(kv_reads(ks + 1, isV) if ks < 15 else wq_reads(0), mem=1)
            spread(rd, 0, sd.get("rdend", 44))
            dm = dma_tile(vm, t + 2) if (ks & 1 and t + 2 < 8) else []
            dm = sd["pre"] + dm
            mem = dm + sd["cold"]
            def spread2(L, g0, g1):
                es = [it.get("e", 0) for it in L]
                spread(L, g0, g1)
                for it, e in zip(L, es):
                    it["e"] = e
            mem = carry + mem
            for it in mem:
                it["t"] = -1
            spread2(sd["post"], 0, 58)
            carry = []
            over = schedule(a, mf, [rd, mem, sd["post"]], ta=ta, carry=(1, carry) if ks < 15 else None)
            if over:
                print(f"  kv {'V' if isV else 'K'} step {ks}: overflow {over}")
        endq.append(list(vm.q))
        if not isV:
            a("s_branch LphB")
        allpaths.append(G.paths[0])
    G.paths = allpaths
    G.label("LphB")
    G.stamp(2)
    q0 = [t for t in endq[0] if isinstance(t, tuple) and t[0] in ("W", "H")]
    q1 = [t for t in endq[1] if isinstance(t, tuple) and t[0] in ("W", "H")]
    assert q0 == q1, (q0, q1)
    vm = VmTrack(["old"] + q0)
    PK = 128
    SW = OPT.get("sw", 8)
    ta = [0]
    HL = OPT.get("hl", 4)
    hq = h_load(vm, 2)
    emit(a, hq.pop(0))
    a(f"s_add_u32 s60, s{SOUT}, 262144")
    a("s_nop 5")
    for k in range(16):
        for j in range(4):
            a(f"v_cvt_pk_bf16_f32 v{PK+4*k+j}, v{8*k+2*j}, v{8*k+2*j+1}")
        if k & 3 == 3 and hq:
            emit(a, hq.pop(0))
    TM = VC
    stores = []
    for k in range(16):
        d = PK + 4 * k
        A = [vitem(vm, "S", f"buffer_store_dwordx4 v[{d}:{d+3}], v{VL16}, s[28:31], s{SOUT} offen offset:{1024*(k & 3)}", w=SW)]
        if k & 3 == 3:
            A.append(item(f"s_add_u32 s{SOUT}, s{SOUT}, 4096"))
        d = (200, 212)[k & 1]
        B = []
        for h2 in range(2):
            B += [f"v_accvgpr_read_b32 v{TM+t}, a{8*k+4*h2+t}" for t in range(4)]
            B += [f"v_cvt_pk_bf16_f32 v{d+2*h2}, v{TM}, v{TM+1}", f"v_cvt_pk_bf16_f32 v{d+2*h2+1}, v{TM+2}, v{TM+3}"]
        B = items(B) + [vitem(vm, "S", f"buffer_store_dwordx4 v[{d}:{d+3}], v{VL16}, s[28:31], s60 offen offset:{1024*(k & 3)}", w=SW)]
        if k & 3 == 3:
            B.append(item("s_add_u32 s60, s60, 4096"))
        stores += [B, A]
    if OPT.get("nokvs") == 1:
        a("s_mov_b32 s30, 0")
    if OPT.get("nokvs") == 3:
        a(f"s_cmp_lt_u32 s{S_W}, 2")
        a("s_cselect_b32 s30, 0, s30")
    if OPT.get("nokvs") == 2:
        a(f"s_cmp_ge_u32 s{S_W}, 2")
        a("s_cselect_b32 s30, 0, s30")
    NSS = OPT.get("nss", 16)
    SARR = OPT.get("sarr", 20)
    VF3 = 221
    a(f"s_lshl_b32 s6, s{S_H}, 8")
    a(f"s_add_u32 s6, s6, {FL + 256*F_S3}")
    a(f"v_mov_b32 v{VF3}, s6")
    def s3_arrive():
        a(f"s_cmp_lg_u32 s{S_W}, 0")
        a("s_cbranch_scc1 Lnos3")
        a("s_getreg_b32 s6, hwreg(HW_REG_XCC_ID, 0, 4)")
        a("v_readfirstlane_b32 s7, v222")
        a("s_lshl_b32 s6, s6, 2")
        a("s_lshl_b32 s6, 8, s6")
        a("s_cmp_eq_u32 s6, s7")
        a("s_cbranch_scc1 Lsamex")
        G.label("Lwb", rec=False)
        a("buffer_wbl2 sc1")
        a("s_waitcnt vmcnt(0)")
        G.label("Lsamex")
        a(G.arrive_text(VF3, VONE, SWS))
        a(f"s_cmp_lg_u32 s{S_I}, 0")
        a("s_cbranch_scc1 Lnos3")
        a(G.arrive_text(VF3, VONE, SWS, 12))
        G.label("Lnos3")
    SLAST = OPT.get("slast", 18)
    hfree, wnext, hnext = [], OPT.get("nw0", 17), 3
    CAP = OPT.get("cap", 73) / 10
    sacc = 0.0
    for ks in range(20):
        mf = []
        hf_, hb = HS[ks]
        for db in range(8):
            for g in range(4):
                d = 32 * g + 4 * db
                w = AWB[ks & 1] + 4 * db
                mf.append([f"{MF} {R('v', d, 4)}, a[{w}:{w+3}], {R(hf_, hb+4*g, 4)}, {'0' if ks == 0 else R('v', d, 4)}", []])
        need = {("H", ks)}
        if ks % 2 == 0:
            need |= {("W", ks + 1), ("W", ks + 2)}
        if ks == SARR:
            need |= {"S", "old", "xc"}
        a(vm.wait(need, lgkm=0))
        a(mf.pop(0)[0])
        if ks % 2 == 0 and not OPT.get("ab", 0) & 16:
            a("s_barrier")
        if ks == SARR:
            s3_arrive()
        G.stamp(f"b{ks}")
        rd = spread(items(wq_reads(ks + 1), mem=1), 0, 18) if ks < 19 else []
        ld = []
        if ks:
            hfree.append(HS[ks - 1])
        if wnext <= min(19, ks + OPT.get("wl", 8)):
            ld += w_dma(vm, wnext)
            wnext += 1
        nh = 0
        while hnext <= min(19, ks + HL) and nh < 2:
            if hnext not in HS:
                HS[hnext] = hfree.pop(0)
            ld += h_load(vm, hnext)
            hnext += 1
            nh += 1
        if ks == 4:
            ld.append(vitem(vm, "xc", f"global_load_dword v222, v{VF3}, s[{SWS}:{SWS+1}] offset:4 sc1"))
        spread(ld, 0, 28)
        st = []
        sacc += CAP - sum(1 for it in ld if is_vmem(it))
        while stores and (sacc >= SW / 4 or ks == SLAST):
            st += stores.pop(0)
            sacc -= SW / 4
        spread(st, 0, 28)
        AB = OPT.get("ab", 0)
        if AB & 1:
            ld = [it for it in ld if not is_vmem(it) or it.get("tag") == "xc"]
        if AB & 2:
            st = [it for it in st if not is_vmem(it)]
        if AB & 4:
            st = []
        if AB & 8:
            rd = []
        over = schedule(a, mf, [rd, ld, st], ta=ta)
        if over:
            print(f"  qproj step {ks}: overflow {over}")
    assert not stores and wnext == 20, (len(stores), wnext)
    if SARR == 20:
        a(vm.wait({"S", "old", "xc"}))
        a("s_barrier")
        s3_arrive()
    G.stamp(3)
    a(G.poll_text(VT, VF3, SWS))
    a(f"s_mul_i32 s6, s{S_H}, {HSTR}")
    a(f"s_add_u32 s7, s6, {WS['kf'][0]}")
    a(f"s_add_u32 s{SRD_K}, s{SWS}, s7")
    a(f"s_addc_u32 s{SRD_K+1}, s{SWS+1}, 0")
    a(f"s_and_b32 s{SRD_K+1}, s{SRD_K+1}, 0xffff")
    a(f"s_sub_u32 s7, 16, s{S_I}")
    a(f"s_lshl_b32 s{SRD_K+2}, s7, 15")
    a(f"s_mov_b32 s{SRD_K+3}, 0x20000")
    a(f"s_add_u32 s7, s6, {WS['vf'][0] - 32768}")
    a(f"s_add_u32 s{SRD_V}, s{SWS}, s7")
    a(f"s_addc_u32 s{SRD_V+1}, s{SWS+1}, 0")
    a(f"s_and_b32 s{SRD_V+1}, s{SRD_V+1}, 0xffff")
    a(f"s_add_u32 s{SRD_V+2}, s{SRD_K+2}, 32768")
    a(f"s_mov_b32 s{SRD_V+3}, 0x20000")
    a(f"s_lshl_b32 s{S_OFF}, s{S_W}, 12")
    a(f"s_mov_b32 s{S_MASK}, 0xffff")
    for g in range(4):
        for db in range(8):
            d = 32 * g + 4 * db
            q = Q0 + 16 * g + 4 * (db >> 1) + 2 * (db & 1)
            a(f"v_cvt_pk_bf16_f32 v{q}, v{d}, v{d+1}")
            a(f"v_cvt_pk_bf16_f32 v{q+1}, v{d+2}, v{d+3}")
    a("s_waitcnt vmcnt(0)")
    G.poll_check(VT, VF3, SWS, 8)
    G.stamp(4)
    flat(a, dma_items(k=True, v=False))
    dq = dma_items(k=True, v=False) + dma_items()
    real_a, t_ = a, Asm()
    a = t_
    a = real_a
    a(f"s_sub_u32 s38, s2, {32*RP0}")
    a("s_lshl_b32 s38, s38, 2")
    a(f"s_add_u32 s38, s38, s{S_W}")
    a("s_cmp_lt_u32 s38, 364")
    a("s_cbranch_scc1 Lrp_a")
    G.label("Lrp_w1")
    srd_in(a, 16, P("w1"), SZ["w1"])
    srd_ws(a, 24, SWS, "w1f")
    a("s_cmp_lt_u32 s38, 472")
    a("s_cselect_b32 s18, s18, 0")
    a("s_cselect_b32 s26, s26, 0")
    a("s_sub_u32 s6, s38, 364")
    a("s_and_b32 s7, s6, 3")
    a("s_lshr_b32 s6, s6, 2")
    a(f"s_mul_i32 s44, s7, {5*32*3456}")
    a("s_lshl_b32 s45, s6, 7")
    a("s_add_u32 s44, s44, s45")
    a(f"s_mul_i32 s100, s6, {4*20480}")
    a("s_mul_i32 s7, s7, 5120")
    a("s_add_u32 s100, s100, s7")
    a(f"s_mov_b32 s45, {32*3456}")
    a("s_mov_b32 s101, 1024")
    a("s_mov_b32 s42, 3456")
    a("s_mov_b32 s43, 20480")
    a("s_branch Lrp_c")
    G.label("Lrp_a", rec=False)
    srd_in(a, 16, P("wo"), SZ["wo"])
    srd_ws(a, 24, SWS, "wof")
    a(f"s_mov_b32 s43, {WSTR}")
    a("s_mov_b32 s6, s38")
    a("s_cmp_lt_u32 s38, 256")
    a("s_cbranch_scc1 Lrp_b")
    srd_in(a, 16, P("w2"), SZ["w2"])
    srd_ws(a, 24, SWS, "w2f")
    a("s_mov_b32 s43, 55296")
    a("s_sub_u32 s6, s38, 256")
    G.label("Lrp_b", rec=False)
    a("s_and_b32 s7, s6, 1")
    a("s_lshr_b32 s6, s6, 1")
    a(f"s_mul_i32 s44, s6, {32*1280}")
    a("s_mul_i32 s45, s7, 640")
    a("s_add_u32 s44, s44, s45")
    a("s_lshl_b32 s101, s43, 2")
    a("s_mul_i32 s100, s7, s101")
    a("s_mul_i32 s100, s100, 5")
    a("s_lshl_b32 s6, s6, 10")
    a("s_add_u32 s100, s100, s6")
    a("s_mov_b32 s45, 128")
    a("s_mov_b32 s42, 1280")
    G.label("Lrp_c")
    if OPT.get("norp"):
        a("s_mov_b32 s18, 0")
    a("s_mov_b32 s49, s26")
    a("s_mov_b32 s26, 0")
    a("s_mov_b32 s38, 0")
    a(f"s_lshl_b32 s60, s{S_W}, 13")
    a(f"s_add_u32 s60, s60, {SPARE}")
    a = t_
    a(f"v_mov_b32 v{VK}, v{VL16}")
    a(f"v_add_u32 v{VV}, {65536 + 3*16384}, v{VL16}")
    a(f"v_and_b32 v2, 15, v{VLANE}")
    a(f"s_lshl_b32 s6, s{S_W}, 4")
    a("v_add_u32 v2, s6, v2")
    a(f"v_lshrrev_b32 v3, 4, v{VLANE}")
    a("v_lshlrev_b32 v3, 2, v3")
    a("v_sub_u32 v2, v2, v3")
    a(f"v_mov_b32 v4, {hex(f32bits(-BIG))}")
    zi = list(range(AO, AO + 144))
    for kb in range(4):
        for t in range(4):
            a(f"v_cmp_gt_i32 vcc, {16*kb + t}, v2")
            a(f"v_accvgpr_write_b32 a{zi.pop()}, 0")
            a(f"v_accvgpr_write_b32 a{zi.pop()}, 0")
            a(f"v_cndmask_b32 v{BIAS + 4*kb + t}, 0, v4, vcc")
    for r in zi:
        a(f"v_accvgpr_write_b32 a{r}, 0")
    a(f"v_mov_b32 v{VT}, 0x3f803f80")
    for r in range(4):
        a(f"v_accvgpr_write_b32 a{AONE + r}, v{VT}")
    a(f"s_cmp_eq_u32 s{S_I}, 0")
    a(f"s_cselect_b32 s{S_Z}, 1.0, 0")
    a = real_a
    todo = [l.strip() for l in t_.lines]
    per = len(todo) // (len(dq) + 1)
    for n, l in enumerate(todo):
        a(l)
        if dq and n % per == per - 1 and not l.startswith("s_cmp"):
            emit(a, dq.pop(0))
    assert not dq
    G.stamp("q0")
    a("s_waitcnt vmcnt(12)")
    a("s_barrier")
    G.stamp("q1")
    for n, g2 in enumerate(kgroups(1, 0)):
        a(group_reads(g2, 4 * n)[1])
    G4, G3, G2 = [0, 1, 2, 3], [1, 2, 3], [2, 3]
    RA, RT, RV, RO, RD = 240, 241, 242, 246, 160
    rsu = [f"v_lshrrev_b32 v{RT}, 2, v{VLANE}", f"v_lshlrev_b32 v{RA}, 7, v{RT}", f"v_bfe_u32 v{RT}, v{VLANE}, 3, 2",
           f"v_lshl_add_u32 v{RA}, v{RT}, 5, v{RA}", f"v_and_b32 v{RT}, 3, v{VLANE}", f"v_lshl_add_u32 v{RA}, v{RT}, 3, v{RA}",
           f"v_add_u32 v{RA}, s60, v{RA}",
           f"v_bfe_u32 v{RV}, v{VLANE}, 1, 2", f"v_lshrrev_b32 v{RT}, 4, v{VLANE}", f"v_xor_b32 v{RV}, v{RV}, v{RT}",
           f"v_lshlrev_b32 v{RV}, 5, v{RV}", f"v_and_b32 v{RT}, 1, v{VLANE}", f"v_lshl_add_u32 v{RV}, v{RT}, 4, v{RV}",
           f"v_lshrrev_b32 v{RT}, 3, v{VLANE}", f"v_mad_u32_u24 v{RV}, v{RT}, s42, v{RV}",
           "s_lshl_b32 s42, s42, 3", "s_sub_u32 s42, s42, 1024"]
    rsu += [f"v_add_u32 v{RV+j}, s42, v{RV+j-1}" for j in range(1, 4)]
    rsu += [f"v_mov_b32 v{RO}, v{VL16}"] + [f"v_add_u32 v{RO+j}, s43, v{RO+j-1}" for j in range(1, 4)]
    pos = iteration(a, 1, 0, xs=[spread(items(rsu), 1, 30)], qk=dict(typ=1, gs=G4, groups=kgroups(1, 0), mask=(0, 0, True), czero=True),
                    nxt=kgroups(1, 1), name="pro0", first_wait=True, dma=dma_items())
    t_ = Asm()
    for g in (1, 2, 3, 0):
        b0, b1, m = S0 + 4 * g, S0 + 16 + 4 * g, ET + g
        t_(f"v_max3_f32 v{m}, v{b0}, v{b0+1}, v{b0+2}")
        t_(f"v_max3_f32 v{m}, v{m}, v{b0+3}, v{b1}")
        t_(f"v_max3_f32 v{m}, v{m}, v{b1+1}, v{b1+2}")
        t_(f"v_max_f32 v{m}, v{m}, v{b1+3}")
    t_(quad_red("v_max_f32", [ET, ET + 1, ET + 2, ET + 3], ET + 4))
    for g in range(4):
        for t in range(4):
            t_(f"v_sub_f32 v{NEGM+4*g+t}, 0, v{ET+g}")
    for g in range(4):
        for kb in range(2):
            for t in range(4):
                r = S0 + 16 * kb + 4 * g + t
                t_(f"v_sub_f32 v{r}, v{r}, v{ET+g}")
    a("s_nop 4")
    for l in t_.lines:
        a(l.strip())
    pos = iteration(a, 0, pos, qk=dict(typ=1, gs=G4, groups=kgroups(1, 1), mask=(0, 2, True)),
                    sm=dict(typ=1, gs=G4), nxt=kgroups(1, 0, adv="exact"), bar=8, dma=dma_items(), name="pro1")
    assert pos == 0
    G.stamp("p1")
    a(f"s_cmp_eq_u32 s{S_I}, 7")
    a(f"s_cselect_b32 s{S_Z}, 1.0, 0")
    a(f"s_lshl_b32 s{S_CNT}, s{S_I}, 1")
    a(f"s_sub_u32 s{S_CNT}, s{S_CNT}, 1")
    a(f"s_cmp_eq_u32 s{S_I}, 0")
    a("s_cbranch_scc1 LmaskB")

    def body1(qa, qb, sma, smb, pva, pvb, nxtb, name, extra=(), xa=(), xb=(), bar=8):
        p = iteration(a, 1, 0, qk=dict(typ=1, groups=kgroups(1, 0), **qa), sm=dict(typ=1, gs=sma),
                      pv=dict(typ=1, gs=pva, groups=vgroups(1, 0, adv="exact")), nxt=kgroups(1, 1), name=name + "a",
                      extra=extra, xs=xa)
        p = iteration(a, 0, p, qk=dict(typ=1, groups=kgroups(1, 1), **qb), sm=dict(typ=1, gs=smb),
                      pv=dict(typ=1, gs=pvb, groups=vgroups(1, 1)), nxt=nxtb, bar=bar, xs=xb, dma=dma_items(), name=name + "b")
        return p
    pA, pB = G.paths
    G.paths = [pA]
    a(".p2align 4")
    G.label("Lloop1")
    xa = [item(f"s_sub_u32 s{S_CNT}, s{S_CNT}, 1"), item("s_add_u32 s38, s38, 1"), item("s_sub_u32 s6, s38, 3"),
          item(["s_cmp_lt_u32 s6, 5", "s_cselect_b32 s26, s49, 0"], 1, lead=1),
          item(["s_cmp_lt_u32 s6, 5", "s_cselect_b32 s7, s101, 0"], 1, lead=1)]
    xa += [item(f"buffer_store_dwordx4 a[{RD+4*j}:{RD+4*j+3}], v{RO+j}, s[24:27], s100 offen sc1", 2, mem=1) for j in range(4)]
    m = item("s_mov_b32 m0, s60")
    xa += [item("s_add_u32 s100, s100, s7"), item(["s_cmp_lt_u32 s38, 6", "s_cselect_b32 s18, s18, 0"], 1, lead=1), m]
    xa += [item(f"buffer_load_dwordx4 v{RV+j}, s[16:19], s44 offen offset:{1024*j} lds", 2, mem=1) for j in range(4)]
    xa[-4]["after"], xa[-4]["dist"] = m, 1
    xa += [item("s_add_u32 s44, s44, s45"), item("s_xor_b32 s60, s60, 4096")]
    k = 0
    for it in xa:
        it["e"] = it["t"] = 6 + 7 * k if it.get("mem") else 0
        it["t"] -= 100
        k += bool(it.get("mem"))
    xb = [item(f"v_xor_b32 v{RA}, 4096, v{RA}")]
    for j in range(4):
        xb += [item(f"v_xor_b32 v{RT}, {32*j}, v{RA}"),
               item(f"ds_read_b64_tr_b16 a[{RD+4*j}:{RD+4*j+1}], v{RT}"),
               item(f"ds_read_b64_tr_b16 a[{RD+4*j+2}:{RD+4*j+3}], v{RT} offset:2048")]
    for it in xb:
        it["e"], it["t"] = 52, -30
    body1(dict(gs=G4), dict(gs=G4), G4, G4, G4, G4, kgroups(1, 0, adv="exact"), "loop1", xa=[xa], xb=[xb], bar=16)
    a(f"s_cmp_lg_u32 s{S_CNT}, 0")
    a("s_cbranch_scc1 Lloop1")
    pA.append("Lloop1")
    G.label("LmaskA")
    G.stamp("mA")
    body1(dict(gs=G4, mask=(0, 0, False)), dict(gs=G4, mask=(0, 2, False)), G4, G4, G4, G4,
          kgroups(1, 0, adv="exact"), "maskA")
    G.arrive_w0(VF3, VONE, SWS, 12)
    G.paths = [pA, pB]
    G.label("LmaskB")
    G.stamp("mB")
    body1(dict(gs=G3, mask=(1, 0, False)), dict(gs=G3, mask=(1, 2, False)), G4, G3, G4, G4,
          kgroups(2, adv="exact")[:2], "maskB")
    U = 16384
    p = iteration(a, 1, 0, qk=dict(typ=2, gs=G2, groups=kgroups(2), mask=(2, 0, True)), sm=dict(typ=1, gs=G3),
                  pv=dict(typ=1, gs=G3, groups=vgroups(1, 0, up=U)), nxt=kgroups(2, up=U)[:2], name="trans",
                  extra=items([f"s_lshl_b32 s{S_CNT}, s{S_I}, 1", f"s_sub_u32 s{S_CNT}, 13, s{S_CNT}"]))
    assert p == 8
    G.stamp("x1")
    a(f"s_cmp_eq_u32 s{S_I}, 7")
    a("s_cbranch_scc1 LX2")
    G.paths = [pA]
    G.label("LX1")
    p = iteration(a, 0, 8, qk=dict(typ=2, gs=G2, groups=kgroups(2, up=U)), sm=dict(typ=2, gs=G2),
                  pv=dict(typ=1, gs=G3, groups=vgroups(1, 1, up=U)), nxt=kgroups(2, adv="xor")[:2], bar=8,
                  dma=dma_items(), name="X1")
    assert p == 0
    G.stamp("l2")
    a(".p2align 4")
    G.label("Lloop2")
    iteration(a, 1, 0, qk=dict(typ=2, gs=G2, groups=kgroups(2)), sm=dict(typ=2, gs=G2),
              pv=dict(typ=2, gs=G2, groups=vgroups(2, adv="xor")), nxt=kgroups(2, up=U)[:2], bar=8,
              dma=dma_items(), name="loop2a", extra=[item(f"s_sub_u32 s{S_CNT}, s{S_CNT}, 1")])
    iteration(a, 0, 0, qk=dict(typ=2, gs=G2, groups=kgroups(2, up=U)), sm=dict(typ=2, gs=G2),
              pv=dict(typ=2, gs=G2, groups=vgroups(2, up=U)), nxt=kgroups(2, adv="xor")[:2], bar=8,
              dma=dma_items(), name="loop2b")
    a(f"s_cmp_lg_u32 s{S_CNT}, 0")
    a("s_cbranch_scc1 Lloop2")
    pA.append("Lloop2")
    G.label("LtailA")
    G.stamp("tA")
    iteration(a, 1, 0, qk=dict(typ=2, gs=G2, groups=kgroups(2), mask=(2, 0, False)), sm=dict(typ=2, gs=G2),
              pv=dict(typ=2, gs=G2, groups=vgroups(2, adv="xor")), nxt=kgroups(2, up=U)[:2], bar=8,
              dma=dma_items(k=False), name="tailA1")
    iteration(a, 0, 0, qk=dict(typ=2, gs=[3], groups=kgroups(2, up=U), mask=(3, 0, False)), sm=dict(typ=2, gs=G2),
              pv=dict(typ=2, gs=G2, groups=vgroups(2, up=U)), nxt=vgroups(2, adv="xor")[:2], bar=4, name="tailA2")
    a("s_branch LtailB")
    G.paths = [pB]
    G.label("LX2")
    p = iteration(a, 0, 8, qk=dict(typ=2, gs=[3], groups=kgroups(2, up=U), mask=(3, 0, False)), sm=dict(typ=2, gs=G2),
                  pv=dict(typ=1, gs=G3, groups=vgroups(1, 1, up=U)), nxt=vgroups(2, adv="xor")[:2], bar=8, name="X2")
    assert p == 0
    G.paths = [pA, pB]
    G.label("LtailB")
    G.stamp("tB")
    VPA = 222
    ex = items([f"v_and_b32 v{VF3}, 31, v{VLANE}", f"v_lshlrev_b32 v{VF3}, 8, v{VF3}",
                f"v_add_u32 v{VF3}, {FL + 256*F_S3 + 12}, v{VF3}"]) + [item(G.poll_text(VPA, VF3, SWS), 2)]
    import mega_tail
    su = glue(srd_items(mega_tail.t1_setup))
    n1 = OPT.get("su1", 12)
    iteration(a, 1, 0, sm=dict(typ=2, gs=[3]), pv=dict(typ=2, gs=G2, groups=vgroups(2)),
              nxt=vgroups(2, up=U)[:2], bar=0, name="tailB1", extra=ex + su[:n1])
    a("s_nop 1")
    iteration(a, 0, 0, pv=dict(typ=2, gs=[3], groups=vgroups(2, up=U)), name="tailB2", extra=su[n1:])
    G.stamp(5)
    a("s_barrier")
    a(f"s_mov_b32 s7, {hex(f32bits(2.0**64))}")
    a("s_waitcnt vmcnt(0)")
    G.poll_check(VPA, VF3, SWS, S3ALL)
    a("s_nop 2")
    for g in range(4):
        a(f"v_accvgpr_read_b32 v{ET+g}, a{AL+4*g}")
    a(f"v_cmp_ngt_f32 vcc, s7, v{ET}")
    for g in range(1, 4):
        a(f"v_cmp_ngt_f32 s[48:49], s7, v{ET+g}")
        a("s_nop 0")
        a("s_or_b64 vcc, vcc, s[48:49]")
    a("s_cmp_lg_u64 vcc, 0")
    a("s_cbranch_scc1 Lslow")
    pB += ["Lslow", "Lslowl", "Lslowl"]
    G.label("Lepi")
    mega_tail.tail(G, SBLK)
    G.paths = []
    G.label("Lslow")
    M = NEGM
    for r in range(AO, AO + 144):
        a(f"v_accvgpr_write_b32 a{r}, 0")
    a(f"v_and_b32 v{VT}, 15, v{VLANE}")
    for g in range(4):
        a(f"v_mov_b32 v{M+g}, {hex(f32bits(-BIG))}")
        a(f"s_lshl_b32 s6, s{SBLK+g}, 4")
        a(f"v_add_u32 v{M+4+g}, s6, v{VT}")
    a(f"v_lshrrev_b32 v{M+8}, 4, v{VLANE}")
    a(f"v_lshlrev_b32 v{M+8}, 2, v{M+8}")
    a(f"v_mov_b32 v{M+9}, {hex(f32bits(-BIG))}")
    a(f"s_mov_b32 s{S_OFF}, 0")
    G.label("Lslowl")
    for k in range(8):
        a(f"s_add_u32 s6, s{S_OFF}, {1024*k}")
        a(f"buffer_load_dwordx4 a[{ARING+4*k}:{ARING+4*k+3}], v{VL16}, s[{SRD_K}:{SRD_K+3}], s6 offen")
        a(f"s_add_u32 s6, s{S_OFF}, {32768 + 1024*k}")
        a(f"buffer_load_dwordx4 a[{ARING+32+4*k}:{ARING+32+4*k+3}], v{VL16}, s[{SRD_V}:{SRD_V+3}], s6 offen")
    a("s_waitcnt vmcnt(0)")
    for kb in range(2):
        for g in range(4):
            d = S0 + 16 * kb + 4 * g
            for sg in range(4):
                r = ARING + 16 * kb + 4 * sg
                q = Q0 + 16 * g + 4 * sg
                a(f"{MF} {R('v', d, 4)}, a[{r}:{r+3}], v[{q}:{q+3}], {'0' if sg == 0 else R('v', d, 4)}")
    a("s_nop 7")
    for g in range(4):
        a(f"v_sub_u32 v{VT}, v{M+4+g}, v{M+8}")
        for kb in range(2):
            for t in range(4):
                r = S0 + 16 * kb + 4 * g + t
                a(f"v_cmp_gt_i32 vcc, {16*kb + t}, v{VT}")
                a("s_nop 1")
                a(f"v_cndmask_b32 v{r}, v{r}, v{M+9}, vcc")
        b0, b1, m = S0 + 4 * g, S0 + 16 + 4 * g, ET + g
        a(f"v_max3_f32 v{m}, v{b0}, v{b0+1}, v{b0+2}")
        a(f"v_max3_f32 v{m}, v{m}, v{b0+3}, v{b1}")
        a(f"v_max3_f32 v{m}, v{m}, v{b1+1}, v{b1+2}")
        a(f"v_max3_f32 v{m}, v{m}, v{b1+3}, v{M+g}")
    a(quad_red("v_max_f32", [ET, ET + 1, ET + 2, ET + 3], ET + 4))
    for g in range(4):
        a(f"v_sub_f32 v{ET+4+g}, v{M+g}, v{ET+g}")
        a(f"v_mov_b32 v{M+g}, v{ET+g}")
        a(f"v_exp_f32 v{ET+4+g}, v{ET+4+g}")
    for g in range(4):
        regs = [AO + 32 * g + k for k in range(32)] + [AL + 4 * g + k for k in range(4)]
        for r in regs:
            a(f"v_accvgpr_read_b32 v{VT}, a{r}")
            a(f"v_mul_f32 v{VT}, v{ET+4+g}, v{VT}")
            a(f"v_accvgpr_write_b32 a{r}, v{VT}")
        for kb in range(2):
            for t in range(4):
                r = S0 + 16 * kb + 4 * g + t
                a(f"v_sub_f32 v{r}, v{r}, v{M+g}")
            for t in range(4):
                r = S0 + 16 * kb + 4 * g + t
                a(f"v_exp_f32 v{r}, v{r}")
            a("s_nop 0")
            r = S0 + 16 * kb + 4 * g
            a(f"v_cvt_pk_bf16_f32 v{P0+4*g+2*kb}, v{r}, v{r+1}")
            a(f"v_cvt_pk_bf16_f32 v{P0+4*g+2*kb+1}, v{r+2}, v{r+3}")
    a("s_nop 1")
    for db in range(8):
        r = ARING + 32 + 4 * db
        for g in range(4):
            o = AO + 32 * g + 4 * db
            a(f"{MF} {R('a', o, 4)}, a[{r}:{r+3}], {R('v', P0+4*g, 4)}, {R('a', o, 4)}")
    for g in range(4):
        a(f"{MF} {R('a', AL+4*g, 4)}, {R('a', AONE, 4)}, {R('v', P0+4*g, 4)}, {R('a', AL+4*g, 4)}")
    a(f"v_add_u32 v{M+8}, 32, v{M+8}")
    a(f"s_add_u32 s{S_OFF}, s{S_OFF}, 8192")
    a(f"s_cmp_lt_u32 s{S_OFF}, s{SRD_K+2}")
    a("s_nop 7")
    a("s_cbranch_scc1 Lslowl")
    a("s_branch Lepi")
    G.label("Lend")
    a("s_endpgm")
    kernel_desc(a, NAME, vgpr=512, accum=256)
    errs = []
    for p in [pA, pB]:
        errs += a.check(p)
    return errs


if __name__ == "__main__":
    import sys
    out = sys.argv[1] if len(sys.argv) > 1 else "m.s"
    HEADER = open("adaLN_cond__compressed_kv_cla__dense_activation_squared_relu__prompt.s.ref").read().split("; Override launch")[0]
    G = Gen()
    errs = gen(G)
    for e in errs[:40]:
        print("CHECK:", e)
    txt = HEADER + "; @launch grid=(256,1,1) block=(256,1,1) lds=163840\n"
    txt += '.amdgcn_target "amdgcn-amd-amdhsa--gfx950"\n'
    txt += "\n".join(l.strip() if l.startswith("    ") else l for l in G.a.lines) + "\n"
    open(out, "w").write(txt)
    print("wrote", out, len(txt), "bytes", f"{len(errs)} ERRORS" if errs else "")
```
